```python
import torch

def _softmax(x, axis=-1):
    return torch.softmax(x, dim=axis)
def _gelu(x):
    return torch.nn.functional.gelu(x, approximate="tanh")
def _silu(x):
    return torch.nn.functional.silu(x)
def _sigmoid(x):
    return torch.sigmoid(x)
def _layernorm(x, axis=-1, eps=1e-5):
    m = x.mean(dim=axis, keepdim=True)
    v = x.var(dim=axis, keepdim=True, unbiased=False)
    return (x - m) / torch.sqrt(v + eps)
def _scatter_add(tgt, idx, src, axis=0):
    return tgt.clone().index_add_(axis, idx, src)
def _segment_sum(src, seg, n):
    out = torch.zeros((n,) + src.shape[1:], dtype=src.dtype)
    return out.index_add_(0, seg, src)
def _pad(x, pw):
    flat = tuple(v for pair in reversed(pw) for v in pair)
    return torch.nn.functional.pad(x, flat)

kernel_name = 'gated_mix__linear_attn_block__mixer_s_mlp__prompt'

def setup_inputs():

    _w = (lambda a: (lambda t: t.to(torch.bfloat16) if t.is_floating_point() else t)(torch.as_tensor(a)))
    def _A_setup():
        B, S, D = 1, 2048, 1024
        return {
            "x": _w((lambda *s: torch.randn(*s, dtype=torch.bfloat16) * 0.05)(B, S, D)),
            "wqkv": _w((lambda *s: torch.randn(*s, dtype=torch.bfloat16) * 3.2)(D, 3 * D)),
            "wo": _w((lambda *s: torch.randn(*s, dtype=torch.bfloat16) * 1.6)(D, D)),
        }
    _A_in = _A_setup()

    def _B_setup():
        B, S, D, F = 1, 2048, 1024, 3584
        return {
            "x":  _w((lambda *s: torch.randn(*s, dtype=torch.bfloat16) * 0.05)(B, S, D)),
            "w1": _w((lambda *s: torch.randn(*s, dtype=torch.bfloat16) * 3.2)(D, D) * (D ** -0.5)),
            "w2": _w((lambda *s: torch.randn(*s, dtype=torch.bfloat16) * 3.2)(D, D) * (D ** -0.5)),
            "w3": _w((lambda *s: torch.randn(*s, dtype=torch.bfloat16) * 3.2)(D, F) * (D ** -0.5)),
            "w4": _w((lambda *s: torch.randn(*s, dtype=torch.bfloat16) * 1.6)(F, D) * (F ** -0.5)),
        }
    _B_in = _B_setup()

    return {
        "A_x": _A_in["x"],
        "A_wqkv": _A_in["wqkv"],
        "A_wo": _A_in["wo"],
        "B_x": _B_in["x"],
        "B_w1": _B_in["w1"],
        "B_w2": _B_in["w2"],
        "B_w3": _B_in["w3"],
        "B_w4": _B_in["w4"],
        "gate_w": _w((lambda *s: torch.randn(*s, dtype=torch.bfloat16) * 0.05)(1024) * 16.0),
    }

def reference(A_x, A_wqkv, A_wo, B_x, B_w1, B_w2, B_w3, B_w4, gate_w):
    def _A_ref(x, wqkv, wo):
        B, S, D = x.shape
        H = 32; Dh = D // H
        qkv = (lambda x, *d: x.permute(*d))((x @ wqkv).reshape(B, S, 3, H, Dh), 2, 0, 3, 1, 4)
        q, k, v = qkv[0], qkv[1], qkv[2]
        phi = lambda t: torch.where(t > 0, t + 1, torch.exp(t)) + 1e-6
        pq, pk = phi(q), phi(k)
        kv = torch.einsum("bhsd,bhse->bhde", pk, v)
        z = torch.einsum("bhsd->bhd", pk)
        num = torch.einsum("bhqd,bhde->bhqe", pq, kv)
        den = torch.einsum("bhqd,bhd->bhq", pq, z)[..., None] + 1e-6
        o = num / den
        return (lambda x, *d: x.permute(*d))(o, 0, 2, 1, 3).reshape(B, S, D) @ wo

    def _B_ref(x, w1, w2, w3, w4):
        B, S, D = x.shape
        h = _gelu(_layernorm(x, axis=-1) @ w1)
        c = D // 4
        g0 = _pad(h[:, :, 0*c:1*c], ((0, 0), (1, 0), (0, 0)))[:, :S, :]
        g1 = _pad(h[:, :, 1*c:2*c], ((0, 0), (0, 1), (0, 0)))[:, 1:, :]
        g2 = _pad(h[:, :, 2*c:3*c], ((0, 0), (2, 0), (0, 0)))[:, :S, :]
        g3 = _pad(h[:, :, 3*c:   ], ((0, 0), (0, 2), (0, 0)))[:, 2:, :]
        hs = torch.concatenate([g0, g1, g2, g3], axis=-1) @ w2
        x1 = x + hs
        h2 = _gelu(_layernorm(x1, axis=-1) @ w3) @ w4
        return x1 + h2

    x = A_x
    g = _sigmoid((x * gate_w).sum(-1, keepdims=True))
    a = _A_ref(x, A_wqkv, A_wo)
    b = _B_ref(x, B_w1, B_w2, B_w3, B_w4)
    return g * a + (1 - g) * b
```

```python
import re
class Asm:
    def __init__(self):
        self.o = []; self.lab = 0
    def __call__(self, s):
        for line in s.split("\n"):
            m = re.search(r"offset:(\d+)", line)
            if m:
                lim = 4095 if line.lstrip().startswith("buffer_") else 65535
                assert int(m.group(1)) <= lim, line
        self.o.append(s)
    def label(self, base):
        self.lab += 1
        return f"L_{base}_{self.lab}"
    def text(self):
        return "\n".join(self.o) + "\n"

def vr(b, n=1): return f"v{b}" if n == 1 else f"v[{b}:{b+n-1}]"
def sr(b, n=1): return f"s{b}" if n == 1 else f"s[{b}:{b+n-1}]"
def log2(x):
    assert x & (x - 1) == 0, x
    return x.bit_length() - 1
MFMA = "v_mfma_f32_16x16x32_bf16"

KD = '''.section .rodata,"a"
.p2align 6
.amdhsa_kernel {name}
  .amdhsa_next_free_vgpr {vgpr}
  .amdhsa_next_free_sgpr 102
  .amdhsa_accum_offset {vgpr}
  .amdhsa_group_segment_fixed_size 0
  .amdhsa_kernarg_size 96
  .amdhsa_user_sgpr_count 2
  .amdhsa_user_sgpr_kernarg_segment_ptr 1
  .amdhsa_system_sgpr_workgroup_id_x 1
.end_amdhsa_kernel
.text
'''

class Cfg:
    def __init__(self, TM, TN, WM, WN, nst, S, extra=0, wmode=None):
        self.TM, self.TN, self.WM, self.WN, self.nst, self.S = TM, TN, WM, WN, nst, S
        self.BK = 64; self.BS = 16; self.KS = 32; self.steps = 2
        assert WM * WN == 4
        self.wtm = TM // WM; self.wtn = TN // WN
        self.mb = self.wtm // 16; self.nb = self.wtn // 16
        assert self.mb * 16 == self.wtm and self.nb * 16 == self.wtn
        self.xbytes = TM * 128
        self.wrow = TN * 2
        self.wbytes = 64 * self.wrow
        self.extra = extra
        self.xi = self.xbytes // 1024; self.wi = self.wbytes // 1024
        assert self.xi % 4 == 0 and self.wi % 4 == 0
        self.wmode = wmode
        self.stage_bytes = self.xbytes + self.wbytes + self.extra
        self.ring_bytes = self.stage_bytes * self.nst

S_XSRD, S_WSRD = 8, 12
S_WAVE = 20
S_ROW0 = 21; S_CB = 22; S_CA = 23; S_CBB = 24; S_WSTR = 25; S_XSTR = 26
S_KX = 27; S_KW = 28; S_CNT = 29; S_SLOT = 30
S_T0, S_T1, S_T2, S_T3 = 31, 32, 33, 34
S_WSTEP = 35; S_XL = 36; S_WL = 37; S_DELTA = 38; S_KE = 39

def emit_wswz_g(a, c, vd, vk, vt):
    w = c.wrow
    if c.wmode == "k7":
        assert w % 256 == 0
        a(f"v_and_b32 v{vd}, 7, v{vk}"); a(f"v_lshlrev_b32 v{vd}, 1, v{vd}")
    elif w % 256 == 0:
        a(f"v_and_b32 v{vd}, 3, v{vk}"); a(f"v_bfe_u32 v{vt}, v{vk}, 3, 1")
        a(f"v_lshl_or_b32 v{vd}, v{vt}, 2, v{vd}"); a(f"v_lshlrev_b32 v{vd}, 1, v{vd}")
    elif w % 256 == 128:
        a(f"v_bfe_u32 v{vd}, v{vk}, 1, 1"); a(f"v_bfe_u32 v{vt}, v{vk}, 3, 1")
        a(f"v_lshl_or_b32 v{vd}, v{vt}, 1, v{vd}"); a(f"v_lshlrev_b32 v{vd}, 1, v{vd}")
    else:
        assert w % 128 == 64
        a(f"v_bfe_u32 v{vd}, v{vk}, 3, 1"); a(f"v_lshlrev_b32 v{vd}, 1, v{vd}")

def emit_loader(a, c, name, xshift=None, esrd=None, first=None):
    xpw = c.xi // 4; wpw = c.wi // 4
    VL, VT, VR, VG, VM, VE = 1, 2, 3, 4, 5, 6
    VX = 10; VW = VX + xpw
    a(f"v_and_b32 v{VL}, 63, v0")
    a(f"s_sub_u32 s{S_T0}, s{S_WAVE}, 4")
    gpr = c.wrow // 16
    for ii in range(wpw):
        a(f"s_mul_i32 s{S_T1}, s{S_T0}, {wpw*64}")
        a(f"s_add_u32 s{S_T1}, s{S_T1}, {ii*64}")
        a(f"v_add_u32 v{VT}, s{S_T1}, v{VL}")
        if gpr & (gpr - 1) == 0:
            a(f"v_lshrrev_b32 v{VR}, {log2(gpr)}, v{VT}")
            a(f"v_and_b32 v{VG}, {gpr-1}, v{VT}")
        else:
            magic = (1 << 20) // gpr + 1
            for G in range(64 * gpr): assert (G * magic) >> 20 == G // gpr
            a(f"s_mov_b32 s{S_T2}, {magic}")
            a(f"v_mul_lo_u32 v{VR}, v{VT}, s{S_T2}")
            a(f"v_lshrrev_b32 v{VR}, 20, v{VR}")
            a(f"v_mul_u32_u24 v{VG}, {gpr}, v{VR}")
            a(f"v_sub_u32 v{VG}, v{VT}, v{VG}")
        emit_wswz_g(a, c, VM, VR, VT)
        a(f"v_xor_b32 v{VG}, v{VG}, v{VM}")
        a(f"v_mul_lo_u32 v{VR}, v{VR}, s{S_WSTR}")
        a(f"v_lshrrev_b32 v{VT}, 3, v{VG}")
        a(f"v_mul_lo_u32 v{VT}, v{VT}, s{S_CA}")
        a(f"v_add_u32 v{VR}, v{VR}, v{VT}")
        a(f"v_bfe_u32 v{VT}, v{VG}, 2, 1")
        a(f"v_mul_lo_u32 v{VT}, v{VT}, s{S_CBB}")
        a(f"v_add_u32 v{VR}, v{VR}, v{VT}")
        a(f"v_and_b32 v{VT}, 3, v{VG}")
        a(f"v_lshl_add_u32 v{VR}, v{VT}, 4, v{VR}")
        a(f"v_add_u32 v{VW+ii}, s{S_CB}, v{VR}")
    for ii in range(xpw):
        if ii >= 2:
            a(f"s_lshl_b32 s{S_T1}, s{S_XSTR}, 4")
            a(f"v_add_u32 v{VX+ii}, s{S_T1}, v{VX+ii-2}")
            continue
        a(f"s_mul_i32 s{S_T1}, s{S_T0}, {xpw*8}")
        a(f"s_add_u32 s{S_T1}, s{S_T1}, {ii*8}")
        a(f"v_lshrrev_b32 v{VR}, 3, v{VL}")
        a(f"v_add_u32 v{VR}, s{S_T1}, v{VR}")
        a(f"v_bfe_u32 v{VM}, v{VR}, 1, 3")
        a(f"v_and_b32 v{VG}, 7, v{VL}")
        a(f"v_xor_b32 v{VG}, v{VG}, v{VM}")
        a(f"v_add_u32 v{VR}, s{S_ROW0}, v{VR}")
        if xshift: a(f"v_add_u32 v{VR}, {xshift[0] & 0xffffffff}, v{VR}")
        a(f"v_mul_lo_u32 v{VR}, v{VR}, s{S_XSTR}")
        a(f"v_lshl_add_u32 v{VX+ii}, v{VG}, 4, v{VR}")
    if esrd is not None:
        a(f"s_lshl_b32 s{S_T1}, s{S_T0}, 10")
        a(f"v_lshl_add_u32 v{VE}, v{VL}, 4, s{S_T1}")
    a(f"s_mul_i32 s{S_XL}, s{S_T0}, {xpw*1024}")
    a(f"s_mul_i32 s{S_WL}, s{S_T0}, {wpw*1024}")
    a(f"s_add_u32 s{S_WL}, s{S_WL}, {c.xbytes}")
    a(f"s_mov_b32 s{S_SLOT}, 0")
    seq = []
    for ii in range(max(xpw, wpw)):
        if ii < wpw: seq.append(("w", ii))
        if ii < xpw: seq.append(("x", ii))
    if esrd is not None: seq.append(("e", 0))
    n = len(seq)
    def issue():
        a(f"s_add_u32 s{S_T1}, s{S_SLOT}, s{S_XL}")
        a(f"s_add_u32 s{S_T2}, s{S_SLOT}, s{S_WL}")
        for kind, ii in seq:
            if kind == "x":
                a(f"s_add_u32 m0, s{S_T1}, {ii*1024}"); a("s_nop 0")
                a(f"buffer_load_dwordx4 v{VX+ii}, s[{S_XSRD}:{S_XSRD+3}], s{S_KX} offen lds")
            elif kind == "w":
                a(f"s_add_u32 m0, s{S_T2}, {ii*1024}"); a("s_nop 0")
                a(f"buffer_load_dwordx4 v{VW+ii}, s[{S_WSRD}:{S_WSRD+3}], s{S_KW} offen lds")
            else:
                a(f"s_lshl_b32 s{S_T3}, s{S_T0}, 10")
                a(f"s_add_u32 s{S_T3}, s{S_T3}, s{S_SLOT}")
                a(f"s_add_u32 m0, s{S_T3}, {c.xbytes+c.wbytes}"); a("s_nop 0")
                a(f"buffer_load_dwordx4 v{VE}, s[{esrd}:{esrd+3}], s{S_KE} offen lds")
                a(f"s_add_u32 s{S_KE}, s{S_KE}, 4096")
        a(f"s_add_u32 s{S_KX}, s{S_KX}, 128")
        a(f"s_add_u32 s{S_KW}, s{S_KW}, s{S_WSTEP}")
        a(f"s_add_u32 s{S_SLOT}, s{S_SLOT}, {c.stage_bytes}")
        a(f"s_cmp_ge_u32 s{S_SLOT}, {c.ring_bytes}")
        a(f"s_cselect_b32 s{S_SLOT}, 0, s{S_SLOT}")
        if xshift:
            LN = a.label(name + "_nosh")
            a(f"s_and_b32 s{S_T1}, s{S_KX}, 511"); a(f"s_cmp_lg_u32 s{S_T1}, 0"); a(f"s_cbranch_scc1 {LN}")
            d = [(xshift[b + 1] - xshift[b]) for b in range(3)]
            a(f"s_mov_b32 s{S_T1}, {d[0] & 0xffffffff}")
            a(f"s_cmp_eq_u32 s{S_KX}, 1024"); a(f"s_cmov_b32 s{S_T1}, {d[1] & 0xffffffff}")
            a(f"s_cmp_eq_u32 s{S_KX}, 1536"); a(f"s_cmov_b32 s{S_T1}, {d[2] & 0xffffffff}")
            a(f"s_mul_i32 s{S_T1}, s{S_T1}, s{S_XSTR}")
            for ii in range(xpw): a(f"v_add_u32 v{VX+ii}, s{S_T1}, v{VX+ii}")
            a(f"{LN}:")
    nfirst = 0
    if first: nfirst = first()
    for s in range(c.nst - 1): issue()
    nloop = c.S - (c.nst - 1)
    L = a.label(name + "_ld")
    a(f"s_mov_b32 s{S_CNT}, 0")
    a(f"{L}:")
    a(f"s_waitcnt vmcnt({n*(c.nst-2)})")
    a("s_barrier")
    issue()
    a(f"s_add_u32 s{S_CNT}, s{S_CNT}, 1")
    a(f"s_cmp_lt_u32 s{S_CNT}, {nloop}")
    a(f"s_cbranch_scc1 {L}")
    for r in range(c.nst - 2, -1, -1):
        a(f"s_waitcnt vmcnt({n*r})")
        a("s_barrier")

class CRegs:
    def __init__(self, c, base=0):
        self.acc = base
        p = base + c.mb * c.nb * 4
        self.xf = [[p + (b * c.mb + i) * 4 for i in range(c.mb)] for b in range(2)]
        p += 2 * c.mb * 4
        self.wf = [[p + (b * c.nb + j) * 4 for j in range(c.nb)] for b in range(2)]
        p += 2 * c.nb * 4
        self.frag0 = self.xf[0][0]; self.frag_end = p
        self.xa = [p, p + 1]; p += 2
        self.wa = [p + j for j in range(c.nb)]; p += c.nb
        self.free = p
        self.nb = c.nb
    def accb(self, i, j): return self.acc + (i * self.nb + j) * 4

def emit_compute_setup(a, c, R, vtid, vt):
    VL, VA, VB, VC, VD = vt, vt + 1, vt + 2, vt + 3, vt + 4
    a(f"v_and_b32 v{VL}, 63, v{vtid}")
    a(f"s_lshr_b32 s{S_T0}, s{S_WAVE}, {log2(c.WN)}")
    a(f"s_and_b32 s{S_T1}, s{S_WAVE}, {c.WN-1}")
    a(f"v_and_b32 v{VA}, 15, v{VL}")
    a(f"s_mul_i32 s{S_T2}, s{S_T0}, {c.wtm}")
    a(f"v_add_u32 v{VA}, s{S_T2}, v{VA}")
    a(f"v_bfe_u32 v{VB}, v{VA}, 1, 3")
    a(f"v_lshrrev_b32 v{VC}, 4, v{VL}")
    a(f"v_xor_b32 v{VB}, v{VB}, v{VC}")
    a(f"v_lshlrev_b32 v{VB}, 4, v{VB}")
    a(f"v_lshl_add_u32 v{R.xa[0]}, v{VA}, 7, v{VB}")
    a(f"v_xor_b32 v{R.xa[1]}, 64, v{R.xa[0]}")
    a(f"v_lshrrev_b32 v{VA}, 4, v{VL}")
    a(f"v_bfe_u32 v{VB}, v{VL}, 2, 2")
    a(f"v_and_b32 v{VC}, 3, v{VL}")
    a(f"v_lshl_add_u32 v{VD}, v{VA}, {2 if c.wmode == 'k7' else 3}, v{VB}")
    a(f"v_lshlrev_b32 v{VC}, 3, v{VC}")
    emit_wswz_g(a, c, VA, VD, VB)
    a(f"v_lshlrev_b32 v{VA}, 4, v{VA}")
    a(f"v_mul_u32_u24 v{VD}, {c.wrow}, v{VD}")
    a(f"v_add_u32 v{VD}, {c.xbytes}, v{VD}")
    a(f"s_mul_i32 s{S_T2}, s{S_T1}, {c.wtn*2}")
    a(f"v_add_u32 v{VC}, s{S_T2}, v{VC}")
    for j in range(c.nb):
        a(f"v_add_u32 v{VB}, {j*32}, v{VC}")
        a(f"v_xor_b32 v{VB}, v{VB}, v{VA}")
        a(f"v_add_u32 v{R.wa[j]}, v{VB}, v{VD}")

def rset(b, n=4): return set(range(b, b + n))

def frag_reads(c, R, t, buf):
    xs = [(f"ds_read_b128 {vr(R.xf[buf][i],4)}, v{R.xa[t]} offset:{i*2048}", rset(R.xf[buf][i])) for i in range(c.mb)]
    ws = []
    for j in range(c.nb):
        for h in range(2):
            koff = t * 32 + (16 * h if c.wmode == "k7" else 4 * h)
            b = R.wf[buf][j] + 2 * h
            ws.append((f"ds_read_b64_tr_b16 {vr(b,2)}, v{R.wa[j]} offset:{koff*c.wrow}", {b, b + 1}))
    return ws[:2] + xs[:1] + ws[2:] + xs[1:]

class Lds:
    def __init__(self, a):
        self.a = a; self.ops = []; self.done = 0
    def op(self, instr, dest=frozenset()):
        self.a(instr); self.ops.append(set(dest))
    def need(self, regs):
        idx = -1
        for i in range(len(self.ops) - 1, self.done - 1, -1):
            if self.ops[i] & regs: idx = i; break
        if idx < 0: return
        n = min(len(self.ops) - 1 - idx, 15)
        self.a(f"s_waitcnt lgkmcnt({n})")
        self.done = len(self.ops) - n
    def drain(self):
        if self.done < len(self.ops):
            self.a("s_waitcnt lgkmcnt(0)"); self.done = len(self.ops)

def emit_mainloop(a, c, R, name, wfirst=True, bar_at=None, stamp=None, hooks=None):
    nm = c.mb * c.nb
    if bar_at is None: bar_at = nm // 4
    T = Lds(a)
    def mfmas(buf):
        l = []
        for i in range(c.mb):
            for j in range(c.nb):
                acc = vr(R.accb(i, j), 4)
                A, B = (R.wf[buf][j], R.xf[buf][i]) if wfirst else (R.xf[buf][i], R.wf[buf][j])
                l.append((f"{MFMA} {acc}, {vr(A,4)}, {vr(B,4)}, {acc}", rset(A) | rset(B)))
        return l
    def emit_step(buf, slots):
        for mi, (m, regs) in enumerate(mfmas(buf)):
            T.need(regs); a(m)
            for x in slots.get(mi, []):
                if callable(x): x()
                elif isinstance(x, tuple): T.op(*x)
                elif x: a(x)
    def place(slots, instrs, start, per=1):
        p = start; k = 0
        for x in instrs:
            slots.setdefault(min(p, nm - 1), []).append(x)
            k += 1
            if k % per == 0: p += 1
        return p
    adv = [f"s_add_u32 s{S_SLOT}, s{S_SLOT}, 1",
           f"s_cmp_eq_u32 s{S_SLOT}, {c.nst}",
           f"s_cselect_b32 s{S_SLOT}, 0, s{S_SLOT}",
           f"s_mov_b32 s{S_DELTA}, {c.stage_bytes}",
           f"s_cmov_b32 s{S_DELTA}, {-(c.nst-1)*c.stage_bytes & 0xffffffff}",
           f"s_add_u32 s{S_CNT}, s{S_CNT}, 1"]
    def stage(last):
        slots = {}
        rd = frag_reads(c, R, 1, 1)
        oth = [] if last else adv + [f"v_add_u32 v{r}, s{S_DELTA}, v{r}" for r in R.xa + R.wa]
        tot = len(rd) + len(oth)
        per = 1 if tot <= nm else (2 if tot <= 2 * nm else 3)
        p = place(slots, rd, 0, per)
        place(slots, oth, p, per)
        emit_step(0, slots)
        slots = {}
        if not last:
            def sync():
                T.drain(); a("s_barrier")
            p = place(slots, [sync], bar_at)
            rd = frag_reads(c, R, 0, 0)
            per = 1 if len(rd) + p <= nm else (2 if len(rd) + 2 * p <= 2 * nm else 3)
            place(slots, rd, p - 1, per)
        emit_step(1, slots)
    a(f"s_mov_b32 s{S_SLOT}, 0")
    a(f"s_mov_b32 s{S_CNT}, 1")
    a("s_barrier")
    if stamp: a(stamp); a("s_waitcnt lgkmcnt(0)")
    for r in frag_reads(c, R, 0, 0): T.op(*r)
    entry = [set(x) for x in T.ops]
    L = a.label(name + "_mm")
    a(".p2align 6")
    a(f"{L}:")
    for (at, fn) in (hooks or []):
        LH = a.label(name + "_hk")
        a(f"s_cmp_lg_u32 s{S_CNT}, {at}"); a(f"s_cbranch_scc1 {LH}")
        fn()
        a(f"{LH}:")
    stage(False)
    assert T.ops[len(T.ops) - len(entry):] == entry
    T.ops = [set(x) for x in entry]; T.done = 0
    a(f"s_cmp_lt_u32 s{S_CNT}, {c.S}")
    a(f"s_cbranch_scc1 {L}")
    stage(True)
```

```python
from core2 import *
import struct
def f2u(x): return struct.unpack("<I", struct.pack("<f", x))[0]
MB = 1 << 20
WS_PQ = 0; WS_H = 4*MB; WS_A = 8*MB; WS_X1 = 12*MB; WS_H2 = 16*MB
WS_KVP = 32*MB
KVP_STRIDE = 4352
WS_KVA = 34*MB
WS_KVZ = 34*MB + 65536
WS_STAT = 35*MB
WS_CS1 = 35*MB + 65536
WS_CS3 = 35*MB + 262144
WS_ST1 = 36*MB
LOG2E = 1.4426950408889634
GC0 = -2.0 * 0.7978845608028654 * LOG2E
GC1 = GC0 * 0.044715
P_X, P_WQKV, P_WO, P_BX, P_W1, P_W2, P_W3, P_W4, P_GATE, P_OUT, P_DBG, P_WS = [64 + 2 * i for i in range(12)]
S_WS = 16
SC = "sc0 sc1"

def srd(a, d, p, size, off=0):
    if off:
        a(f"s_add_u32 s{d}, s{p}, {off}"); a(f"s_addc_u32 s{d+1}, s{p+1}, 0")
    else:
        a(f"s_mov_b32 s{d}, s{p}"); a(f"s_mov_b32 s{d+1}, s{p+1}")
    a(f"s_mov_b32 s{d+2}, {size}"); a(f"s_mov_b32 s{d+3}, 0x20000")

def kernel_head(a, name):
    a(f".globl {name}\n.p2align 8\n.type {name},@function\n{name}:")
    a(f"s_cmp_ge_u32 s2, 256\ns_cbranch_scc1 L_{name}_end")
    a("s_load_dwordx16 s[64:79], s[0:1], 0")
    a("s_load_dwordx8 s[80:87], s[0:1], 64")
    a(f"v_lshrrev_b32 v1, 6, v0\ns_nop 0\nv_readfirstlane_b32 s{S_WAVE}, v1")

def unpack8(a, src, dst):
    for u in range(4):
        a(f"v_lshlrev_b32 v{dst+2*u}, 16, v{src+u}")
        a(f"v_and_b32 v{dst+2*u+1}, 0xffff0000, v{src+u}")

def allreduce(a, regs, tmps, lo=0):
    DP = ["quad_perm:[1,0,3,2]", "quad_perm:[2,3,0,1]", "row_half_mirror", "row_mirror"]
    pad = max(0, 3 - len(regs))
    for lv in range(lo, 4):
        mod = DP[lv] if lo == 0 else ["quad_perm:[1,0,3,2]", "quad_perm:[2,3,0,1]", "row_ror:4", "row_ror:8"][lv]
        if pad: a(f"s_nop {pad-1}")
        for r in regs: a(f"v_add_f32_dpp v{r}, v{r}, v{r} {mod} row_mask:0xf bank_mask:0xf")
    for ins in ("v_permlane16_swap_b32", "v_permlane32_swap_b32"):
        for r, t in zip(regs, tmps): a(f"v_mov_b32 v{t}, v{r}")
        a("s_nop 1")
        for r, t in zip(regs, tmps): a(f"{ins} v{r}, v{t}")
        a("s_nop 1")
        for r, t in zip(regs, tmps): a(f"v_add_f32 v{r}, v{r}, v{t}")

def colsum_block(a, srd_w, wstride, s_row0, s_colb, s_dst, vl, base, part=3):
    VA = base; L = base + 4; F = base + 40; ACC = base + 48; TM = base + 56
    if part & 1:
        a(f"v_lshrrev_b32 v{VA}, 3, v{vl}")
        a(f"v_add_u32 v{VA}, s{s_row0}, v{VA}")
        a(f"v_mul_u32_u24 v{VA}, {wstride}, v{VA}")
        a(f"v_and_b32 v{VA+1}, 7, v{vl}")
        a(f"v_lshl_add_u32 v{VA}, v{VA+1}, 4, v{VA}")
        a(f"v_add_u32 v{VA}, s{s_colb}, v{VA}")
        for it in range(8):
            a(f"s_mov_b32 s{S_T3}, {it*8*wstride}")
            a(f"buffer_load_dwordx4 {vr(L+4*it,4)}, v{VA}, s[{srd_w}:{srd_w+3}], s{S_T3} offen")
    if not part & 2: return
    for it in range(8):
        if part == 3: a(f"s_waitcnt vmcnt({7-it})")
        if it == 0: unpack8(a, L, ACC)
        else:
            unpack8(a, L + 4 * it, F)
            for u in range(0, 8, 2): a(f"v_pk_add_f32 {vr(ACC+u,2)}, {vr(ACC+u,2)}, {vr(F+u,2)}")
    allreduce(a, list(range(ACC, ACC + 8)), list(range(TM, TM + 8)), lo=3)
    a(f"v_lshlrev_b32 v{VA}, 5, v{vl}")
    a("s_mov_b64 exec, 0xff")
    a(f"buffer_store_dwordx4 {vr(ACC,4)}, v{VA}, s[{S_WS}:{S_WS+3}], s{s_dst} offen {SC}")
    a(f"buffer_store_dwordx4 {vr(ACC+4,4)}, v{VA}, s[{S_WS}:{S_WS+3}], s{s_dst} offen offset:16 {SC}")
    a("s_mov_b64 exec, -1")

def out_addr(a, c, vo, vl, vt, s_row0, s_colb, ostride):
    a(f"s_lshr_b32 s{S_T0}, s{S_WAVE}, {log2(c.WN)}")
    a(f"s_and_b32 s{S_T1}, s{S_WAVE}, {c.WN-1}")
    a(f"s_mul_i32 s{S_T0}, s{S_T0}, {c.wtm}"); a(f"s_add_u32 s{S_T0}, s{S_T0}, s{s_row0}")
    a(f"s_mul_i32 s{S_T1}, s{S_T1}, {c.wtn*2}"); a(f"s_add_u32 s{S_T1}, s{S_T1}, s{s_colb}")
    a(f"v_and_b32 v{vo}, 15, v{vl}"); a(f"v_add_u32 v{vo}, s{S_T0}, v{vo}")
    a(f"v_mul_u32_u24 v{vo}, {ostride}, v{vo}")
    a(f"v_add_u32 v{vo}, s{S_T1}, v{vo}")
    a(f"v_bfe_u32 v{vt}, v{vl}, 5, 1"); a(f"v_lshl_add_u32 v{vo}, v{vt}, 4, v{vo}")
    a(f"v_bfe_u32 v{vt}, v{vl}, 4, 1"); a(f"v_lshl_add_u32 v{vo}, v{vt}, 5, v{vo}")

def store_pair(a, b0, b1, q, vo, srd_o, soff, imm):
    a(f"v_cvt_pk_bf16_f32 v{q}, v{b0}, v{b0+1}"); a(f"v_cvt_pk_bf16_f32 v{q+1}, v{b0+2}, v{b0+3}")
    a(f"v_cvt_pk_bf16_f32 v{q+2}, v{b1}, v{b1+1}"); a(f"v_cvt_pk_bf16_f32 v{q+3}, v{b1+2}, v{b1+3}")
    a(f"s_mov_b32 s{S_T3}, {soff}"); a("s_nop 0")
    a(f"v_permlane16_swap_b32 v{q}, v{q+2}"); a(f"v_permlane16_swap_b32 v{q+1}, v{q+3}")
    a(f"buffer_store_dwordx4 {vr(q,4)}, v{vo}, s[{srd_o}:{srd_o+3}], s{S_T3} offen offset:{imm} {SC}")

def gelu8(a, b0, b1, T, VC1, VC0):
    P = [b0, b0 + 2, b1, b1 + 2]
    for k, p in enumerate(P): a(f"v_pk_mul_f32 {vr(T+2*k,2)}, {vr(p,2)}, {vr(p,2)}")
    for k, p in enumerate(P): a(f"v_pk_fma_f32 {vr(T+2*k,2)}, {vr(T+2*k,2)}, {vr(VC1,2)}, {vr(VC0,2)}")
    for k, p in enumerate(P): a(f"v_pk_mul_f32 {vr(T+2*k,2)}, {vr(T+2*k,2)}, {vr(p,2)}")
    for k in range(8): a(f"v_exp_f32 v{T+k}, v{T+k}")
    for k in range(4): a(f"v_pk_add_f32 {vr(T+2*k,2)}, {vr(T+2*k,2)}, 1.0 op_sel_hi:[1,0]")
    for k in range(8): a(f"v_rcp_f32 v{T+k}, v{T+k}")
    for k, p in enumerate(P): a(f"v_pk_mul_f32 {vr(p,2)}, {vr(p,2)}, {vr(T+2*k,2)}")

def phi8(a, b0, b1, T, VL2E, VEPS):
    P = [b0, b0 + 2, b1, b1 + 2]
    for k, p in enumerate(P): a(f"v_pk_mul_f32 {vr(T+2*k,2)}, {vr(p,2)}, {vr(VL2E,2)}")
    for k in range(8): a(f"v_exp_f32_e64 v{T+k}, v{T+k} clamp")
    for p in P: a(f"v_max_f32 v{p}, 0, v{p}"); a(f"v_max_f32 v{p+1}, 0, v{p+1}")
    for k, p in enumerate(P): a(f"v_pk_add_f32 {vr(p,2)}, {vr(p,2)}, {vr(VEPS,2)}")
    for k, p in enumerate(P): a(f"v_pk_add_f32 {vr(p,2)}, {vr(p,2)}, {vr(T+2*k,2)}")

def atomic_inc(a, srd_d, off, vt, ret=None):
    a(f"v_mov_b32 v{vt}, 1"); a(f"v_mov_b32 v{vt+1}, {off}") if isinstance(off, int) else a(f"v_mov_b32 v{vt+1}, s{off[0]}")
    a("s_mov_b64 exec, 1")
    a(f"buffer_atomic_add v{vt}, v{vt+1}, s[{srd_d}:{srd_d+3}], 0 offen {'sc0 sc1' if ret else 'sc1'}")
    a("s_mov_b64 exec, -1")

def gen_l1(a, st=False):
    name = "l1_kernel"
    c = Cfg(256, 128, 2, 2, 3, 16)
    AUX = c.ring_bytes
    AUX2 = AUX + 2048
    AUXF = AUX2 + 512
    lds = AUXF + 64
    S_DBG = 40; S_GT = 44; S_W1S = 48; S_W3S = 52
    S_TYPE = 56; S_IDX = 57; S_MT = 58
    kernel_head(a, name)
    a("s_and_b32 s3, s2, 7\ns_lshr_b32 s4, s2, 3")
    a("s_lshr_b32 s5, s3, 2\ns_and_b32 s6, s3, 3")
    a("s_lshr_b32 s7, s4, 3\ns_and_b32 s4, s4, 7")
    a(f"s_lshl_b32 s5, s5, 2\ns_add_u32 s{S_MT}, s5, s7")
    a(f"s_lshl_b32 s{S_ROW0}, s{S_MT}, 8")
    a(f"s_mov_b32 s{S_TYPE}, 1\ns_cmp_lt_u32 s4, 2\ns_cmov_b32 s{S_TYPE}, 0\ns_cmp_ge_u32 s4, 6\ns_cmov_b32 s{S_TYPE}, 2")
    a(f"s_mov_b32 s{S_XSTR}, 2048\ns_mov_b32 s{S_KX}, 0\ns_mov_b32 s{S_KW}, 0")
    a("s_waitcnt lgkmcnt(0)")
    srd(a, S_XSRD, P_X, 4 * MB)
    srd(a, S_WS, P_WS, 256 * MB)
    srd(a, S_DBG, P_DBG, 256)
    srd(a, S_GT, P_GATE, 2048)
    srd(a, S_W1S, P_W1, 2 * MB)
    srd(a, S_W3S, P_W3, 7 * MB)
    srd(a, S_WSRD, P_WQKV, 6 * MB)
    LQ, LKV, LH, LJ = [a.label("l1_" + x) for x in ("tq", "tkv", "th", "tj")]
    a(f"s_mov_b32 s{S_WSTR}, 6144\ns_mov_b32 s{S_CA}, 128\ns_mov_b32 s{S_CBB}, 64")
    a(f"s_cmp_eq_u32 s{S_TYPE}, 1\ns_cbranch_scc1 {LKV}")
    a(f"s_cmp_eq_u32 s{S_TYPE}, 2\ns_cbranch_scc1 {LH}")
    a(f"s_lshl_b32 s{S_IDX}, s6, 1\ns_add_u32 s{S_IDX}, s{S_IDX}, s4\ns_lshl_b32 s{S_CB}, s{S_IDX}, 8\ns_branch {LJ}")
    a(f"{LKV}:")
    a(f"s_lshl_b32 s{S_IDX}, s6, 2\ns_add_u32 s{S_IDX}, s{S_IDX}, s4\ns_sub_u32 s{S_IDX}, s{S_IDX}, 2")
    a(f"s_lshl_b32 s{S_CB}, s{S_IDX}, 7\ns_add_u32 s{S_CB}, s{S_CB}, 2048\ns_mov_b32 s{S_CA}, 64\ns_mov_b32 s{S_CBB}, 2048\ns_branch {LJ}")
    a(f"{LH}:")
    a(f"s_lshl_b32 s{S_IDX}, s6, 1\ns_add_u32 s{S_IDX}, s{S_IDX}, s4\ns_sub_u32 s{S_IDX}, s{S_IDX}, 6\ns_lshl_b32 s{S_CB}, s{S_IDX}, 8")
    a(f"s_mov_b32 s{S_WSTR}, 2048")
    srd(a, S_WSRD, P_W1, 2 * MB)
    a(f"{LJ}:")
    a(f"s_lshl_b32 s{S_WSTEP}, s{S_WSTR}, 6")
    LLD = a.label("l1_loader")
    a(f"s_cmp_ge_u32 s{S_WAVE}, 4\ns_cbranch_scc1 {LLD}")
    R = CRegs(c, 0)
    VTID = R.free; VLN = VTID + 1; VT = VTID + 2
    a(f"v_mov_b32 v{VTID}, v0"); a(f"v_and_b32 v{VLN}, 63, v0")
    if st: a("s_memtime s[90:91]")
    X0, X1_, G0 = 0, 8, 16
    a(f"s_lshl_b32 s{S_T0}, s2, 3\ns_lshl_b32 s{S_T1}, s{S_WAVE}, 1\ns_add_u32 s60, s{S_T0}, s{S_T1}   ; row")
    a(f"s_lshl_b32 s{S_T0}, s60, 11")
    a(f"v_lshlrev_b32 v{VT}, 4, v{VLN}")
    for rr in range(2):
        for hh in range(2):
            a(f"buffer_load_dwordx4 {vr(8*rr+4*hh,4)}, v{VT}, s[{S_XSRD}:{S_XSRD+3}], s{S_T0} offen offset:{rr*2048+hh*1024}")
    for hh in range(2):
        a(f"buffer_load_dwordx4 {vr(G0+4*hh,4)}, v{VT}, s[{S_GT}:{S_GT+3}], 0 offen offset:{hh*1024}")
    LNC0 = a.label("l1_nocs0")
    a(f"s_cmp_lg_u32 s{S_WAVE}, 0\ns_cbranch_scc1 {LNC0}")
    a("s_lshr_b32 s61, s2, 4\ns_and_b32 s63, s2, 15")
    a(f"s_lshl_b32 s62, s61, 12\ns_lshl_b32 s59, s63, 8\ns_add_u32 s62, s62, s59\ns_add_u32 s62, s62, {WS_CS1}")
    a("s_lshl_b32 s61, s61, 6\ns_lshl_b32 s63, s63, 7")
    colsum_block(a, S_W1S, 2048, 61, 63, 62, VLN, 128, part=1)
    a(f"{LNC0}:")
    a(f"v_mov_b32 v{VT+1}, {AUXF}\nv_mov_b32 v{VT+2}, 0\nv_mov_b32 v{VT+3}, 0")
    a(f"ds_write_b64 v{VT+1}, {vr(VT+2,2)}")
    emit_compute_setup(a, c, R, VTID, VT + 4)
    F0, F1, FG = 32, 48, 64
    a("s_waitcnt vmcnt(0)")
    for hh in range(2):
        unpack8(a, X0 + 4 * hh, F0 + 8 * hh); unpack8(a, X1_ + 4 * hh, F1 + 8 * hh); unpack8(a, G0 + 4 * hh, FG + 8 * hh)
    S0, S1, D0, D1 = 80, 82, 84, 86
    a(f"v_pk_add_f32 {vr(S0,2)}, {vr(F0,2)}, {vr(F0+2,2)}"); a(f"v_pk_add_f32 {vr(S1,2)}, {vr(F1,2)}, {vr(F1+2,2)}")
    a(f"v_pk_mul_f32 {vr(D0,2)}, {vr(F0,2)}, {vr(FG,2)}"); a(f"v_pk_mul_f32 {vr(D1,2)}, {vr(F1,2)}, {vr(FG,2)}")
    for u in range(2, 16, 2):
        if u >= 4:
            a(f"v_pk_add_f32 {vr(S0,2)}, {vr(S0,2)}, {vr(F0+u,2)}"); a(f"v_pk_add_f32 {vr(S1,2)}, {vr(S1,2)}, {vr(F1+u,2)}")
        a(f"v_pk_fma_f32 {vr(D0,2)}, {vr(F0+u,2)}, {vr(FG+u,2)}, {vr(D0,2)}"); a(f"v_pk_fma_f32 {vr(D1,2)}, {vr(F1+u,2)}, {vr(FG+u,2)}, {vr(D1,2)}")
    for p in (S0, S1, D0, D1): a(f"v_add_f32 v{p}, v{p}, v{p+1}")
    allreduce(a, [S0, S1, D0, D1], [88, 89, 90, 91])
    a(f"v_mul_f32 v{S0}, {f2u(1/1024)}, v{S0}"); a(f"v_mul_f32 v{S1}, {f2u(1/1024)}, v{S1}")
    for u in range(0, 16, 2):
        a(f"v_pk_add_f32 {vr(F0+u,2)}, {vr(F0+u,2)}, {vr(S0,2)} op_sel_hi:[1,0] neg_lo:[0,1] neg_hi:[0,1]")
        a(f"v_pk_add_f32 {vr(F1+u,2)}, {vr(F1+u,2)}, {vr(S1,2)} op_sel_hi:[1,0] neg_lo:[0,1] neg_hi:[0,1]")
    Q0, Q1 = 92, 94
    a(f"v_pk_mul_f32 {vr(Q0,2)}, {vr(F0,2)}, {vr(F0,2)}"); a(f"v_pk_mul_f32 {vr(Q1,2)}, {vr(F1,2)}, {vr(F1,2)}")
    for u in range(2, 16, 2):
        a(f"v_pk_fma_f32 {vr(Q0,2)}, {vr(F0+u,2)}, {vr(F0+u,2)}, {vr(Q0,2)}"); a(f"v_pk_fma_f32 {vr(Q1,2)}, {vr(F1+u,2)}, {vr(F1+u,2)}, {vr(Q1,2)}")
    a(f"v_add_f32 v{Q0}, v{Q0}, v{Q0+1}"); a(f"v_add_f32 v{Q1}, v{Q1}, v{Q1+1}")
    allreduce(a, [Q0, Q1], [88, 89])
    O0, O1 = 96, 100
    a(f"v_mov_b32 v88, {f2u(1e-5)}")
    a(f"v_fmac_f32 v88, {f2u(1/1024)}, v{Q0}"); a(f"v_mov_b32 v89, {f2u(1e-5)}"); a(f"v_fmac_f32 v89, {f2u(1/1024)}, v{Q1}")
    a(f"v_mul_f32 v{D0}, {f2u(-LOG2E)}, v{D0}"); a(f"v_mul_f32 v{D1}, {f2u(-LOG2E)}, v{D1}")
    a(f"v_rsq_f32 v{O0}, v88"); a(f"v_rsq_f32 v{O1}, v89"); a(f"v_exp_f32 v{D0}, v{D0}"); a(f"v_exp_f32 v{D1}, v{D1}")
    a("s_nop 0")
    a(f"v_mul_f32 v{O0+1}, v{S0}, v{O0}"); a(f"v_mul_f32 v{O1+1}, v{S1}, v{O1}")
    a(f"v_add_f32 v{D0}, 1.0, v{D0}"); a(f"v_add_f32 v{D1}, 1.0, v{D1}")
    a(f"v_rcp_f32 v{O0+2}, v{D0}"); a(f"v_rcp_f32 v{O1+2}, v{D1}")
    a(f"v_mov_b32 v{O0+3}, 0"); a(f"v_mov_b32 v{O1+3}, 0")
    a(f"s_lshl_b32 s{S_T0}, s60, 4\ns_add_u32 s{S_T0}, s{S_T0}, {WS_STAT}")
    a(f"v_mov_b32 v{VT}, 0")
    a("s_mov_b64 exec, 1")
    a(f"buffer_store_dwordx4 {vr(O0,4)}, v{VT}, s[{S_WS}:{S_WS+3}], s{S_T0} offen {SC}")
    a(f"buffer_store_dwordx4 {vr(O1,4)}, v{VT}, s[{S_WS}:{S_WS+3}], s{S_T0} offen offset:16 {SC}")
    a("s_mov_b64 exec, -1")
    LNC = a.label("l1_nocs")
    a(f"s_cmp_lg_u32 s{S_WAVE}, 0\ns_cbranch_scc1 {LNC}")
    colsum_block(a, S_W1S, 2048, 61, 63, 62, VLN, 128, part=2)
    a(f"{LNC}:")
    def hk1(): a("s_waitcnt vmcnt(0)")
    def hk2():
        LX = a.label("l1_hk2")
        a(f"s_cmp_lg_u32 s{S_WAVE}, 0\ns_cbranch_scc1 {LX}")
        atomic_inc(a, S_DBG, 128, VT)
        a(f"{LX}:")
    hooks = [(5, hk1), (6, hk2)]
    for r in range(128): a(f"v_mov_b32 v{r}, 0")
    a("s_waitcnt lgkmcnt(0)")
    LCKV, LCH = a.label("l1_ckv"), a.label("l1_ch")
    a(f"s_cmp_eq_u32 s{S_TYPE}, 1\ns_cbranch_scc1 {LCKV}")
    emit_mainloop(a, c, R, "l1w", wfirst=True, stamp="s_memtime s[92:93]" if st else None, hooks=hooks)
    if st: a("s_memtime s[94:95]")
    VO = VT; CK = R.frag0
    a(f"s_cmp_eq_u32 s{S_TYPE}, 2\ns_cbranch_scc1 {LCH}")
    out_addr(a, c, VO, VLN, VT + 1, S_ROW0, S_CB, 2048)
    a(f"v_mov_b32 v{CK}, {f2u(LOG2E)}\nv_mov_b32 v{CK+1}, {f2u(LOG2E)}\nv_mov_b32 v{CK+2}, {f2u(1e-6)}\nv_mov_b32 v{CK+3}, {f2u(1e-6)}")
    a("s_nop 7")
    n = 0
    for i in range(c.mb):
        for j in range(0, c.nb, 2):
            b0, b1 = R.accb(i, j), R.accb(i, j + 1)
            phi8(a, b0, b1, CK + 8, CK, CK + 2)
            store_pair(a, b0, b1, CK + 16 + 4 * (n & 3), VO, S_WS, WS_PQ + i * 16 * 2048, j * 32); n += 1
    a(f"s_branch L_{name}_fin")
    a(f"{LCH}:")
    out_addr(a, c, VO, VLN, VT + 1, S_ROW0, S_CB, 2048)
    a(f"v_mov_b32 v{CK}, {f2u(GC1)}\nv_mov_b32 v{CK+1}, {f2u(GC1)}\nv_mov_b32 v{CK+2}, {f2u(GC0)}\nv_mov_b32 v{CK+3}, {f2u(GC0)}")
    STt = CK + 32; CS = CK + 48
    a(f"s_lshr_b32 s{S_T0}, s{S_WAVE}, 1\ns_and_b32 s{S_T1}, s{S_WAVE}, 1")
    a(f"s_lshl_b32 s{S_T0}, s{S_T0}, 10\ns_add_u32 s{S_T0}, s{S_T0}, {AUX}")
    a(f"v_and_b32 v{VT+1}, 15, v{VLN}\nv_lshl_add_u32 v{VT+1}, v{VT+1}, 3, s{S_T0}")
    a(f"s_lshl_b32 s{S_T1}, s{S_T1}, 8\ns_add_u32 s{S_T1}, s{S_T1}, {AUX2}")
    a(f"v_lshrrev_b32 v{VT+2}, 4, v{VLN}\nv_lshl_add_u32 v{VT+2}, v{VT+2}, 4, s{S_T1}")
    a("s_barrier")
    for i in range(c.mb): a(f"ds_read_b64 {vr(STt+2*i,2)}, v{VT+1} offset:{i*128}")
    for j in range(c.nb): a(f"ds_read_b128 {vr(CS+4*j,4)}, v{VT+2} offset:{j*64}")
    a("s_waitcnt lgkmcnt(0)")
    n = 0
    for i in range(c.mb):
        for j in range(0, c.nb, 2):
            b0, b1 = R.accb(i, j), R.accb(i, j + 1)
            T8 = CK + 8
            for k, (p, cs) in enumerate(((b0, CS + 4 * j), (b0 + 2, CS + 4 * j + 2), (b1, CS + 4 * j + 4), (b1 + 2, CS + 4 * j + 6))):
                a(f"v_pk_mul_f32 {vr(T8+2*k,2)}, {vr(cs,2)}, {vr(STt+2*i,2)} op_sel:[0,1] op_sel_hi:[1,1]")
            for k, p in enumerate((b0, b0 + 2, b1, b1 + 2)):
                a(f"v_pk_fma_f32 {vr(p,2)}, {vr(p,2)}, {vr(STt+2*i,2)}, {vr(T8+2*k,2)} op_sel_hi:[1,0,1] neg_lo:[0,0,1] neg_hi:[0,0,1]")
            gelu8(a, b0, b1, T8, CK, CK + 2)
            store_pair(a, b0, b1, CK + 16 + 4 * (n & 3), VO, S_WS, WS_H + i * 16 * 2048, j * 32); n += 1
    a(f"s_branch L_{name}_fin")
    a(f"{LCKV}:")
    emit_mainloop(a, c, R, "l1x", wfirst=False, stamp="s_memtime s[92:93]" if st else None, hooks=hooks)
    if st: a("s_memtime s[94:95]")
    a(f"v_mov_b32 v{CK}, {f2u(LOG2E)}\nv_mov_b32 v{CK+1}, {f2u(LOG2E)}\nv_mov_b32 v{CK+2}, {f2u(1e-6)}\nv_mov_b32 v{CK+3}, {f2u(1e-6)}")
    ONES = CK + 4; KV = CK + 16; Z = CK + 32; OP = CK + 40
    for u in range(4): a(f"v_mov_b32 v{ONES+u}, 0x3f803f80")
    for u in range(24): a(f"v_mov_b32 v{KV+u}, 0")
    a("s_nop 7")
    for ip in range(0, c.mb, 2):
        O = OP + 16 * ((ip // 2) & 1)
        for db in range(2):
            phi8(a, R.accb(ip, db), R.accb(ip + 1, db), CK + 8, CK, CK + 2)
        for jb in range(4):
            for hh in range(2):
                b = R.accb(ip + hh, jb)
                a(f"v_cvt_pk_bf16_f32 v{O+4*jb+2*hh}, v{b}, v{b+1}"); a(f"v_cvt_pk_bf16_f32 v{O+4*jb+2*hh+1}, v{b+2}, v{b+3}")
        a("s_nop 1")
        for db in range(2):
            for eb in range(2):
                k = KV + 4 * (db * 2 + eb)
                a(f"{MFMA} {vr(k,4)}, {vr(O+4*db,4)}, {vr(O+8+4*eb,4)}, {vr(k,4)}")
            a(f"{MFMA} {vr(Z+4*db,4)}, {vr(O+4*db,4)}, {vr(ONES,4)}, {vr(Z+4*db,4)}")
    a("s_nop 7\ns_nop 7")
    RED = 2 * c.stage_bytes
    a(f"s_and_b32 s{S_T1}, s{S_WAVE}, 1\ns_mul_i32 s{S_T0}, s{S_T1}, 6144\ns_add_u32 s{S_T0}, s{S_T0}, {RED}")
    a(f"v_lshl_add_u32 v{VT}, v{VLN}, 4, s{S_T0}")
    a(f"s_lshl_b32 s{S_T1}, s{S_T1}, 2\ns_add_u32 s{S_T1}, s{S_T1}, {AUXF}\nv_mov_b32 v{VT+1}, s{S_T1}")
    LW0 = a.label("l1_w0")
    a(f"s_cmp_lt_u32 s{S_WAVE}, 2\ns_cbranch_scc1 {LW0}")
    for u in range(6): a(f"ds_write_b128 v{VT}, {vr(KV+4*u,4)} offset:{u*1024}")
    a(f"v_mov_b32 v{VT+2}, 1")
    a("s_waitcnt lgkmcnt(0)")
    a(f"ds_write_b32 v{VT+1}, v{VT+2}")
    a("s_waitcnt lgkmcnt(0)")
    a(f"s_branch L_{name}_fin")
    a(f"{LW0}:")
    LP = a.label("l1_pollw")
    a(f"{LP}:")
    a(f"ds_read_b32 v{VT+2}, v{VT+1}\ns_waitcnt lgkmcnt(0)\nv_readfirstlane_b32 s{S_T0}, v{VT+2}\ns_cmp_eq_u32 s{S_T0}, 0\ns_cbranch_scc1 {LP}")
    for u in range(6): a(f"ds_read_b128 {vr(4*u,4)}, v{VT} offset:{u*1024}")
    a("s_waitcnt lgkmcnt(0)")
    for u in range(0, 24, 2): a(f"v_pk_add_f32 {vr(KV+u,2)}, {vr(KV+u,2)}, {vr(u,2)}")
    a(f"s_lshl_b32 s60, s{S_IDX}, 1\ns_add_u32 s60, s60, s{S_WAVE}     ; head")
    a(f"s_lshl_b32 s{S_T0}, s60, 3\ns_add_u32 s{S_T0}, s{S_T0}, s{S_MT}\ns_mul_i32 s{S_T0}, s{S_T0}, {KVP_STRIDE}\ns_add_u32 s{S_T0}, s{S_T0}, {WS_KVP}")
    a(f"v_and_b32 v{VT}, 15, v{VLN}\nv_lshlrev_b32 v{VT}, 7, v{VT}\nv_lshrrev_b32 v{VT+1}, 4, v{VLN}\nv_lshl_add_u32 v{VT}, v{VT+1}, 4, v{VT}")
    for db in range(2):
        for eb in range(2):
            a(f"buffer_store_dwordx4 {vr(KV+4*(db*2+eb),4)}, v{VT}, s[{S_WS}:{S_WS+3}], s{S_T0} offen offset:{eb*2048+db*64} {SC}")
    a(f"v_lshlrev_b32 v{VT+1}, 4, v{VT+1}")
    a("s_mov_b32 exec_lo, 0x00010001\ns_mov_b32 exec_hi, 0x00010001")
    a(f"s_add_u32 s{S_T1}, s{S_T0}, 4096")
    for db in range(2):
        a(f"buffer_store_dwordx4 {vr(Z+4*db,4)}, v{VT+1}, s[{S_WS}:{S_WS+3}], s{S_T1} offen offset:{db*64} {SC}")
    a("s_mov_b64 exec, -1")
    a("s_waitcnt vmcnt(0)")
    a(f"s_lshl_b32 s61, s60, 2")
    atomic_inc(a, S_DBG, (61,), VT + 2, ret=True)
    a("s_waitcnt vmcnt(0)")
    a(f"v_readfirstlane_b32 s{S_T0}, v{VT+2}")
    a(f"s_cmp_lg_u32 s{S_T0}, 7\ns_cbranch_scc1 L_{name}_fin")
    a(f"s_mul_i32 s{S_T0}, s60, {8*KVP_STRIDE}\ns_add_u32 s{S_T0}, s{S_T0}, {WS_KVP}")
    a(f"v_and_b32 v{VT}, 15, v{VLN}\nv_lshlrev_b32 v{VT}, 7, v{VT}\nv_lshrrev_b32 v{VT+1}, 4, v{VLN}\nv_lshl_add_u32 v{VT}, v{VT+1}, 5, v{VT}")
    a(f"v_lshlrev_b32 v{VT+1}, 5, v{VT+1}\nv_add_u32 v{VT+1}, 4096, v{VT+1}   ; z addr: 4096 + o*32")
    for m in range(8):
        for it in range(2):
            for hh in range(2):
                a(f"buffer_load_dwordx4 {vr(m*24+it*8+hh*4,4)}, v{VT}, s[{S_WS}:{S_WS+3}], s{S_T0} offen offset:{it*2048+hh*16} {SC}")
        for hh in range(2):
            a(f"buffer_load_dwordx4 {vr(m*24+16+hh*4,4)}, v{VT+1}, s[{S_WS}:{S_WS+3}], s{S_T0} offen offset:{hh*16} {SC}")
        a(f"s_add_u32 s{S_T0}, s{S_T0}, {KVP_STRIDE}")
    for m in range(1, 8):
        a(f"s_waitcnt vmcnt({(7-m)*6})")
        for u in range(0, 24, 2): a(f"v_pk_add_f32 {vr(u,2)}, {vr(u,2)}, {vr(m*24+u,2)}")
    for u in range(12): a(f"v_cvt_pk_bf16_f32 v{200+u}, v{2*u}, v{2*u+1}")
    a(f"s_lshl_b32 s{S_T0}, s60, 11\ns_add_u32 s{S_T0}, s{S_T0}, {WS_KVA}")
    a(f"v_lshlrev_b32 v{VT}, 4, v{VLN}")
    a(f"buffer_store_dwordx4 v[200:203], v{VT}, s[{S_WS}:{S_WS+3}], s{S_T0} offen {SC}")
    a(f"buffer_store_dwordx4 v[204:207], v{VT}, s[{S_WS}:{S_WS+3}], s{S_T0} offen offset:1024 {SC}")
    a(f"s_lshl_b32 s{S_T0}, s60, 6\ns_add_u32 s{S_T0}, s{S_T0}, {WS_KVZ}")
    a(f"v_and_b32 v{VT}, 48, v{VLN}     ; (l/16)*16")
    a("s_mov_b32 exec_lo, 0x00010001\ns_mov_b32 exec_hi, 0x00010001")
    a(f"buffer_store_dwordx4 v[208:211], v{VT}, s[{S_WS}:{S_WS+3}], s{S_T0} offen {SC}")
    a("s_mov_b64 exec, -1")
    a(f"L_{name}_fin:")
    if st:
        a("s_memtime s[96:97]\ns_waitcnt vmcnt(0)\ns_memtime s[98:99]\ns_waitcnt lgkmcnt(0)")
        a(f"s_cmp_lg_u32 s{S_WAVE}, 0\ns_cbranch_scc1 L_{name}_end")
        a("v_mov_b32 v0, s90\nv_mov_b32 v1, s92\nv_mov_b32 v2, s94\nv_mov_b32 v3, s96\nv_mov_b32 v4, s98\nv_mov_b32 v5, s56\nv_mov_b32 v6, 0\nv_mov_b32 v7, 0")
        a(f"s_lshl_b32 s3, s2, 5\ns_add_u32 s3, s3, {64*MB}\nv_mov_b32 v8, s3")
        a(f"buffer_store_dwordx4 v[0:3], v8, s[{S_WS}:{S_WS+3}], 0 offen\nbuffer_store_dwordx4 v[4:7], v8, s[{S_WS}:{S_WS+3}], 0 offen offset:16")
    a("s_endpgm")
    a(f"{LLD}:")
    emit_loader(a, c, "l1")
    VL = 1
    LT = a.label("l1_ltail")
    a(f"s_cmp_lg_u32 s{S_TYPE}, 2\ns_cbranch_scc1 {LT}")
    LP = a.label("l1_pollc")
    a("v_mov_b32 v2, 128")
    a(f"{LP}:")
    a(f"buffer_load_dword v3, v2, s[{S_DBG}:{S_DBG+3}], 0 offen {SC}\ns_waitcnt vmcnt(0)\nv_readfirstlane_b32 s{S_T1}, v3")
    a(f"s_cmp_lt_u32 s{S_T1}, 256\ns_cbranch_scc1 {LP}")
    a(f"s_sub_u32 s{S_T0}, s{S_WAVE}, 4\ns_lshl_b32 s{S_T1}, s{S_T0}, 6\nv_add_u32 v2, s{S_T1}, v{VL}")
    a(f"v_add_u32 v3, s{S_ROW0}, v2\nv_lshlrev_b32 v3, 4, v3")
    a(f"s_mov_b32 s{S_T2}, {WS_STAT}")
    a(f"buffer_load_dwordx2 v[4:5], v3, s[{S_WS}:{S_WS+3}], s{S_T2} offen {SC}")
    a(f"v_lshlrev_b32 v2, 3, v2\nv_add_u32 v2, {AUX}, v2")
    LNC2 = a.label("l1_nocs2")
    a(f"s_cmp_ge_u32 s{S_T0}, 2\ns_cbranch_scc1 {LNC2}")
    a(f"v_add_u32 v6, s{S_T1}, v{VL}\nv_lshlrev_b32 v6, 2, v6")
    a(f"s_lshl_b32 s{S_T2}, s{S_IDX}, 9\ns_add_u32 s{S_T2}, s{S_T2}, {WS_CS1}")
    for ks in range(16):
        a(f"buffer_load_dword v{8+ks}, v6, s[{S_WS}:{S_WS+3}], s{S_T2} offen {SC}")
        a(f"s_add_u32 s{S_T2}, s{S_T2}, 4096")
    a("s_waitcnt vmcnt(0)")
    for w in (8, 4, 2, 1):
        for u in range(w): a(f"v_add_f32 v{8+u}, v{8+u}, v{8+u+w}")
    a(f"v_add_u32 v6, {AUX2}, v6")
    a("ds_write_b32 v6, v8")
    a(f"{LNC2}:")
    a("s_waitcnt vmcnt(0)")
    a("ds_write_b64 v2, v[4:5]")
    a("s_waitcnt lgkmcnt(0)")
    a("s_barrier")
    a(f"{LT}:")
    a(f"s_sub_u32 s{S_T0}, s{S_WAVE}, 4\ns_lshl_b32 s60, s2, 2\ns_add_u32 s60, s60, s{S_T0}")
    a(f"s_cmp_ge_u32 s60, 896\ns_cbranch_scc1 L_{name}_end")
    a(f"s_mul_i32 s61, s60, 1171\ns_lshr_b32 s61, s61, 16     ; /56")
    a("s_mul_i32 s62, s61, 56\ns_sub_u32 s62, s60, s62       ; ns")
    a(f"s_mul_i32 s63, s61, {3584*4}\ns_lshl_b32 s60, s62, 8\ns_add_u32 s63, s63, s60\ns_add_u32 s63, s63, {WS_CS3}")
    a("s_lshl_b32 s61, s61, 6\ns_lshl_b32 s62, s62, 7")
    colsum_block(a, S_W3S, 7168, 61, 62, 63, VL, 8)
    a(f"L_{name}_end:\ns_endpgm")
    a(KD.format(name=name, vgpr=256))
    return f"; @launch kernel={name} grid=(256,1,1) block=(512,1,1) lds={lds}"

for b in range(896): assert (b * 1171) >> 16 == b // 56

def build(kernels, st=False):
    a = Asm()
    heads = []
    a('.amdgcn_target "amdgcn-amd-amdhsa--gfx950"\n.text')
    for i, k in enumerate(kernels): heads.append(k(a, st is True or st == i + 1))
    return "\n".join(heads) + "\n" + a.text()

def stamps_out(a, name, s_type):
    a("s_memtime s[96:97]\ns_waitcnt vmcnt(0)\ns_memtime s[98:99]\ns_waitcnt lgkmcnt(0)")
    a(f"s_cmp_lg_u32 s{S_WAVE}, 0\ns_cbranch_scc1 L_{name}_end")
    a(f"v_mov_b32 v0, s90\nv_mov_b32 v1, s92\nv_mov_b32 v2, s94\nv_mov_b32 v3, s96\nv_mov_b32 v4, s98\nv_mov_b32 v5, {s_type}\nv_mov_b32 v6, 0\nv_mov_b32 v7, 0")
    a(f"s_lshl_b32 s3, s2, 5\ns_add_u32 s3, s3, {64*MB}\nv_mov_b32 v8, s3")
    a(f"buffer_store_dwordx4 v[0:3], v8, s[{S_WS}:{S_WS+3}], 0 offen\nbuffer_store_dwordx4 v[4:7], v8, s[{S_WS}:{S_WS+3}], 0 offen offset:16")

def unswap_unpack(a, q, f0, f1):
    a(f"v_permlane16_swap_b32 v{q}, v{q+2}"); a(f"v_permlane16_swap_b32 v{q+1}, v{q+3}")
    a("s_nop 0")
    for (s_, f) in ((q, f0), (q + 1, f0 + 2), (q + 2, f1), (q + 3, f1 + 2)):
        a(f"v_lshlrev_b32 v{f}, 16, v{s_}"); a(f"v_and_b32 v{f+1}, 0xffff0000, v{s_}")

def qreduce(a, regs, tmps):
    for ins in ("v_permlane16_swap_b32", "v_permlane32_swap_b32"):
        for r, t in zip(regs, tmps): a(f"v_mov_b32 v{t}, v{r}")
        if len(regs) < 3: a("s_nop 1")
        for r, t in zip(regs, tmps): a(f"{ins} v{r}, v{t}")
        if len(regs) < 3: a("s_nop 1")
        for r, t in zip(regs, tmps): a(f"v_add_f32 v{r}, v{r}, v{t}")

def gen_l2(a, st=False):
    name = "l2_kernel"
    c4 = Cfg(128, 128, 2, 2, 4, 16)
    c3 = Cfg(128, 128, 4, 1, 4, 16, extra=4096, wmode="k7")
    ZOFF = c3.ring_bytes
    lds = ZOFF + 2048
    S_XIN = 40; S_KVS = 44; S_TYPE = 56; S_MT = 57; S_NT = 58
    kernel_head(a, name)
    a("s_and_b32 s3, s2, 7\ns_lshr_b32 s4, s2, 3")
    a("s_lshr_b32 s5, s3, 1\ns_and_b32 s6, s3, 1")
    a(f"s_lshr_b32 s{S_TYPE}, s4, 4\ns_bfe_u32 s7, s4, 0x20002\ns_and_b32 s4, s4, 3")
    a(f"s_lshl_b32 s5, s5, 2\ns_add_u32 s{S_MT}, s5, s7")
    a(f"s_lshl_b32 s6, s6, 2\ns_add_u32 s{S_NT}, s6, s4")
    a(f"s_lshl_b32 s{S_ROW0}, s{S_MT}, 7\ns_lshl_b32 s{S_CB}, s{S_NT}, 8")
    a(f"s_mov_b32 s{S_XSTR}, 2048\ns_mov_b32 s{S_KX}, 0\ns_mov_b32 s{S_KW}, 0\ns_mov_b32 s{S_KE}, 0")
    a(f"s_mov_b32 s{S_WSTR}, 2048\ns_mov_b32 s{S_CA}, 128\ns_mov_b32 s{S_CBB}, 64\ns_mov_b32 s{S_WSTEP}, {2048*64}")
    a("s_waitcnt lgkmcnt(0)")
    srd(a, S_WS, P_WS, 256 * MB)
    srd(a, S_XIN, P_X, 4 * MB)
    srd(a, S_KVS, P_WS, 65536 + 2048, WS_KVA)
    L3 = a.label("l2_g3")
    a(f"s_cmp_eq_u32 s{S_TYPE}, 0\ns_cbranch_scc1 {L3}")
    c = c4
    srd(a, S_XSRD, P_WS, 4 * MB, WS_H)
    srd(a, S_WSRD, P_W2, 2 * MB)
    LLD4 = a.label("l2_ld4")
    a(f"s_cmp_ge_u32 s{S_WAVE}, 4\ns_cbranch_scc1 {LLD4}")
    R = CRegs(c, 0)
    VTID = R.free; VLN = VTID + 1; VO = VTID + 2; VT = VTID + 3
    XR = (VT + 8 + 3) // 4 * 4
    a(f"v_mov_b32 v{VTID}, v0"); a(f"v_and_b32 v{VLN}, 63, v0")
    if st: a("s_memtime s[90:91]")
    out_addr(a, c, VO, VLN, VT, S_ROW0, S_CB, 2048)
    n = 0
    for i in range(c.mb):
        for j in range(0, c.nb, 2):
            a(f"s_mov_b32 s{S_T3}, {i*16*2048}")
            a(f"buffer_load_dwordx4 {vr(XR+4*n,4)}, v{VO}, s[{S_XIN}:{S_XIN+3}], s{S_T3} offen offset:{j*32}"); n += 1
    emit_compute_setup(a, c, R, VTID, VT)
    for r in range(c.mb * c.nb * 4): a(f"v_mov_b32 v{r}, 0")
    emit_mainloop(a, c, R, "l2g4", wfirst=True, stamp="s_memtime s[92:93]" if st else None)
    if st: a("s_memtime s[94:95]")
    CK = R.frag0
    a("s_waitcnt vmcnt(0)")
    a("s_nop 4")
    n = 0
    SUM = CK + 32; M2 = CK + 36; TMP = CK + 40
    for i in range(c.mb):
        for j in range(0, c.nb, 2):
            b0, b1 = R.accb(i, j), R.accb(i, j + 1)
            unswap_unpack(a, XR + 4 * n, CK, CK + 4)
            for k, p in enumerate((b0, b0 + 2, b1, b1 + 2)): a(f"v_pk_add_f32 {vr(p,2)}, {vr(p,2)}, {vr(CK+2*k,2)}")
            store_pair(a, b0, b1, CK + 16 + 4 * (n & 3), VO, S_WS, WS_X1 + i * 16 * 2048, j * 32); n += 1
        b = R.accb(i, 0)
        a(f"v_pk_add_f32 {vr(CK+8,2)}, {vr(b,2)}, {vr(b+2,2)}")
        for u in range(4, 16, 2): a(f"v_pk_add_f32 {vr(CK+8,2)}, {vr(CK+8,2)}, {vr(b+u,2)}")
        a(f"v_add_f32 v{SUM+i}, v{CK+8}, v{CK+9}")
    qreduce(a, [SUM + i for i in range(4)], [TMP + i for i in range(4)])
    for i in range(c.mb):
        b = R.accb(i, 0)
        a(f"v_mul_f32 v{CK+8}, {f2u(1/64)}, v{SUM+i}")
        for u in range(0, 16, 2): a(f"v_pk_add_f32 {vr(b+u,2)}, {vr(b+u,2)}, {vr(CK+8,2)} op_sel_hi:[1,0] neg_lo:[0,1] neg_hi:[0,1]")
        a(f"v_pk_mul_f32 {vr(CK+10,2)}, {vr(b,2)}, {vr(b,2)}")
        for u in range(2, 16, 2): a(f"v_pk_fma_f32 {vr(CK+10,2)}, {vr(b+u,2)}, {vr(b+u,2)}, {vr(CK+10,2)}")
        a(f"v_add_f32 v{M2+i}, v{CK+10}, v{CK+11}")
    qreduce(a, [M2 + i for i in range(4)], [TMP + i for i in range(4)])
    a(f"s_lshr_b32 s{S_T0}, s{S_WAVE}, 1\ns_and_b32 s{S_T1}, s{S_WAVE}, 1")
    a(f"s_lshl_b32 s{S_T0}, s{S_T0}, 6\ns_add_u32 s{S_T0}, s{S_T0}, s{S_ROW0}\ns_lshl_b32 s{S_T0}, s{S_T0}, 7")
    a(f"s_lshl_b32 s{S_T2}, s{S_NT}, 1\ns_add_u32 s{S_T1}, s{S_T1}, s{S_T2}\ns_lshl_b32 s{S_T1}, s{S_T1}, 3")
    a(f"s_add_u32 s{S_T0}, s{S_T0}, s{S_T1}\ns_add_u32 s{S_T0}, s{S_T0}, {WS_ST1}")
    a(f"v_lshlrev_b32 v{VT}, 7, v{VLN}")
    for i in range(c.mb): a(f"v_mov_b32 v{CK+2*i}, v{SUM+i}"); a(f"v_mov_b32 v{CK+2*i+1}, v{M2+i}")
    a("s_mov_b64 exec, 0xffff")
    for i in range(c.mb):
        a(f"buffer_store_dwordx2 {vr(CK+2*i,2)}, v{VT}, s[{S_WS}:{S_WS+3}], s{S_T0} offen {SC}")
        a(f"s_add_u32 s{S_T0}, s{S_T0}, 2048")
    a("s_mov_b64 exec, -1")
    if st: stamps_out(a, name, 1)
    a("s_endpgm")
    a(f"{LLD4}:")
    emit_loader(a, c, "l2g4", xshift=[-1, 1, -2, 2])
    a("s_endpgm")
    a(f"{L3}:")
    c = c3
    srd(a, S_XSRD, P_WS, 4 * MB, WS_PQ)
    srd(a, S_WSRD, P_WO, 2 * MB)
    LLD3 = a.label("l2_ld3")
    a(f"s_cmp_ge_u32 s{S_WAVE}, 4\ns_cbranch_scc1 {LLD3}")
    R = CRegs(c, 0)
    p = R.free
    VTID = p; VLN = p + 1; VO = p + 2; VKA = p + 3; VZA = p + 4; VT = p + 5
    p = (VT + 6 + 3) // 4 * 4
    KVF = [[p + (b * 3 + u) * 4 for u in range(3)] for b in range(2)]; p += 24
    NUM = [[p + (i * 3 + u) * 4 for u in range(3)] for i in range(2)]; p += 24
    OF = [[p + (b * 2 + i) * 4 for i in range(2)] for b in range(2)]; p += 16
    assert p <= 256
    a(f"v_mov_b32 v{VTID}, v0"); a(f"v_and_b32 v{VLN}, 63, v0")
    if st: a("s_memtime s[90:91]")
    emit_compute_setup(a, c, R, VTID, VT)
    a(f"v_lshlrev_b32 v{VKA}, 4, v{VLN}\nv_add_u32 v{VKA}, {c.xbytes+c.wbytes}, v{VKA}")
    a(f"v_and_b32 v{VZA}, 48, v{VLN}\nv_add_u32 v{VZA}, {ZOFF}, v{VZA}")
    for r in range(64): a(f"v_mov_b32 v{r}, 0")
    T = Lds(a)
    def att_reads(t):
        l = [(f"ds_read_b128 {vr(R.xf[t][0],4)}, v{R.xa[t]}", rset(R.xf[t][0]))]
        l += [(f"ds_read_b128 {vr(KVF[t][e],4)}, v{VKA} offset:{t*2048+e*1024}", rset(KVF[t][e])) for e in range(2)]
        l += [(f"ds_read_b128 {vr(KVF[t][2],4)}, v{VZA} offset:{t*64}", rset(KVF[t][2]))]
        l += [(f"ds_read_b128 {vr(R.xf[t][1],4)}, v{R.xa[t]} offset:2048", rset(R.xf[t][1]))]
        return l
    def w_reads(t):
        l = []
        for j in range(c.nb):
            for h in range(2):
                b = R.wf[t][j] + 2 * h
                l.append((f"ds_read_b64_tr_b16 {vr(b,2)}, v{R.wa[j]} offset:{(t*32+16*h)*c.wrow}", {b, b + 1}))
        return l
    def att_mfma(t):
        l = []
        for i in range(2):
            for u in (2, 0, 1):
                l.append(("M", f"{MFMA} {vr(NUM[i][u],4)}, {vr(KVF[t][u],4)}, {vr(R.xf[t][i],4)}, 0", rset(KVF[t][u]) | rset(R.xf[t][i])))
        return l
    def att_valu(t):
        l = []
        for i in range(2): l.append(f"v_add_f32 v{NUM[i][2]}, {f2u(1e-6)}, v{NUM[i][2]}")
        for i in range(2): l.append(f"v_rcp_f32 v{NUM[i][2]}, v{NUM[i][2]}")
        l.append("s_nop 0")
        for i in range(2):
            for u in range(2):
                for k in (0, 2):
                    l.append(f"v_pk_mul_f32 {vr(NUM[i][u]+k,2)}, {vr(NUM[i][u]+k,2)}, {vr(NUM[i][2],2)} op_sel_hi:[1,0]")
        for i in range(2):
            for u in range(2):
                for k in (0, 2):
                    l.append(f"v_cvt_pk_bf16_f32 v{OF[t][i]+2*u+k//2}, v{NUM[i][u]+k}, v{NUM[i][u]+k+1}")
        return l
    def main_mfma(t):
        l = []
        for i in range(2):
            for j in range(c.nb):
                acc = vr(R.accb(i, j), 4)
                l.append(("M", f"{MFMA} {acc}, {vr(R.wf[t][j],4)}, {vr(OF[t][i],4)}, {acc}", rset(R.wf[t][j])))
        return [l[i * c.nb + j] for j in range(c.nb) for i in range(2)]
    def emit(x):
        if callable(x): x()
        elif isinstance(x, tuple) and x[0] == "M": T.need(x[2]); a(x[1])
        elif isinstance(x, tuple): T.op(*x)
        else: a(x)
    def weave(ms, fill, per, start=0):
        fi = 0
        for mi, m in enumerate(ms):
            emit(m)
            if mi >= start:
                for _ in range(per):
                    if fi < len(fill): emit(fill[fi]); fi += 1
        while fi < len(fill): emit(fill[fi]); fi += 1
    adv = [f"s_add_u32 s{S_SLOT}, s{S_SLOT}, 1", f"s_cmp_eq_u32 s{S_SLOT}, {c.nst}", f"s_cselect_b32 s{S_SLOT}, 0, s{S_SLOT}",
           f"s_mov_b32 s{S_DELTA}, {c.stage_bytes}", f"s_cmov_b32 s{S_DELTA}, {-(c.nst-1)*c.stage_bytes & 0xffffffff}",
           f"s_add_u32 s{S_CNT}, s{S_CNT}, 1"] + [f"v_add_u32 v{r}, s{S_DELTA}, v{r}" for r in R.xa + R.wa + [VKA]] + [f"v_add_u32 v{VZA}, 128, v{VZA}"]
    def step0(last):
        M = main_mfma(0)
        weave(att_mfma(1) + M[:4], w_reads(1), 2)
        weave(M[4:], att_valu(1) + ([] if last else adv), 3)
        a("s_nop 0")
    def step1(last):
        M = main_mfma(1)
        if last:
            for m in M: emit(m)
            return
        emit(M[0]); emit(M[1])
        T.drain(); a("s_barrier")
        rd = att_reads(0) + w_reads(0) + att_reads(1)
        weave(M[2:8], rd[:18], 3)
        weave(att_mfma(0) + M[8:10], rd[18:], 1)
        weave(M[10:], att_valu(0), 4)
        a("s_nop 0")
    a(f"s_mov_b32 s{S_SLOT}, 0\ns_mov_b32 s{S_CNT}, 1")
    a("s_barrier")
    if st: a("s_memtime s[92:93]\ns_waitcnt lgkmcnt(0)")
    for x in att_reads(0) + w_reads(0) + att_reads(1): emit(x)
    for x in att_mfma(0): emit(x)
    a("s_nop 7")
    for x in att_valu(0): emit(x)
    a("s_nop 0")
    T.drain()
    L = a.label("l2g3_mm")
    a(".p2align 6"); a(f"{L}:")
    step0(False); step1(False)
    T.drain()
    a(f"s_cmp_lt_u32 s{S_CNT}, {c.S}\ns_cbranch_scc1 {L}")
    step0(True); step1(True)
    if st: a("s_memtime s[94:95]")
    out_addr(a, c, VO, VLN, VT, S_ROW0, S_CB, 2048)
    a("s_nop 4")
    CK = R.frag0; n = 0
    for i in range(c.mb):
        for j in range(0, c.nb, 2):
            store_pair(a, R.accb(i, j), R.accb(i, j + 1), CK + 4 * (n & 3), VO, S_WS, WS_A + i * 16 * 2048, j * 32); n += 1
    if st: stamps_out(a, name, 0)
    a("s_endpgm")
    a(f"{LLD3}:")
    def first():
        LX = a.label("l2_zf")
        a(f"s_cmp_ge_u32 s{S_T0}, 2\ns_cbranch_scc1 {LX}")
        a(f"s_lshl_b32 s{S_T1}, s{S_T0}, 10\ns_add_u32 m0, s{S_T1}, {ZOFF}\ns_mov_b32 s{S_T2}, 65536")
        a(f"buffer_load_dwordx4 v6, s[{S_KVS}:{S_KVS+3}], s{S_T2} offen lds")
        a(f"{LX}:")
        return 1
    emit_loader(a, c, "l2g3", esrd=S_KVS, first=first)
    a(f"L_{name}_end:\ns_endpgm")
    a(KD.format(name=name, vgpr=256))
    return f"; @launch kernel={name} grid=(256,1,1) block=(512,1,1) lds={lds}"

def gen_l3(a, st=False):
    name = "l3_kernel"
    c = Cfg(128, 224, 2, 2, 3, 16)
    AUX = c.ring_bytes; AUX2 = AUX + 1024
    lds = AUX2 + 1024
    S_MT = 57; S_NT = 58
    kernel_head(a, name)
    a("s_and_b32 s3, s2, 7\ns_lshr_b32 s4, s2, 3")
    a("s_lshr_b32 s5, s3, 2\ns_and_b32 s6, s3, 3")
    a("s_lshr_b32 s7, s4, 2\ns_and_b32 s4, s4, 3")
    a(f"s_lshl_b32 s5, s5, 3\ns_add_u32 s{S_MT}, s5, s7")
    a(f"s_lshl_b32 s6, s6, 2\ns_add_u32 s{S_NT}, s6, s4")
    a(f"s_lshl_b32 s{S_ROW0}, s{S_MT}, 7\ns_mul_i32 s{S_CB}, s{S_NT}, 448")
    a(f"s_mov_b32 s{S_XSTR}, 2048\ns_mov_b32 s{S_KX}, 0\ns_mov_b32 s{S_KW}, 0")
    a(f"s_mov_b32 s{S_WSTR}, 7168\ns_mov_b32 s{S_CA}, 128\ns_mov_b32 s{S_CBB}, 64\ns_mov_b32 s{S_WSTEP}, {7168*64}")
    a("s_waitcnt lgkmcnt(0)")
    srd(a, S_WS, P_WS, 256 * MB)
    srd(a, S_XSRD, P_WS, 4 * MB, WS_X1)
    srd(a, S_WSRD, P_W3, 7 * MB)
    LLD = a.label("l3_ld")
    a(f"s_cmp_ge_u32 s{S_WAVE}, 4\ns_cbranch_scc1 {LLD}")
    R = CRegs(c, 0)
    VTID = R.free; VLN = VTID + 1; VO = VTID + 2; VO2 = VTID + 3; VT = VTID + 4
    a(f"v_mov_b32 v{VTID}, v0"); a(f"v_and_b32 v{VLN}, 63, v0")
    if st: a("s_memtime s[90:91]")
    emit_compute_setup(a, c, R, VTID, VT)
    for r in range(c.mb * c.nb * 4): a(f"v_mov_b32 v{r}, 0")
    emit_mainloop(a, c, R, "l3", wfirst=True, stamp="s_memtime s[92:93]" if st else None)
    if st: a("s_memtime s[94:95]")
    CK = R.frag0
    out_addr(a, c, VO, VLN, VT, S_ROW0, S_CB, 7168)
    a(f"v_and_b32 v{VO2}, 15, v{VLN}\nv_add_u32 v{VO2}, s{S_T0}, v{VO2}\nv_mul_u32_u24 v{VO2}, 7168, v{VO2}\nv_add_u32 v{VO2}, s{S_T1}, v{VO2}")
    a(f"v_lshrrev_b32 v{VT}, 4, v{VLN}\nv_lshl_add_u32 v{VO2}, v{VT}, 3, v{VO2}")
    a(f"v_mov_b32 v{CK}, {f2u(GC1)}\nv_mov_b32 v{CK+1}, {f2u(GC1)}\nv_mov_b32 v{CK+2}, {f2u(GC0)}\nv_mov_b32 v{CK+3}, {f2u(GC0)}")
    STt = CK + 32; CS = CK + 40
    a(f"s_lshr_b32 s{S_T0}, s{S_WAVE}, 1\ns_and_b32 s{S_T1}, s{S_WAVE}, 1")
    a(f"s_lshl_b32 s{S_T0}, s{S_T0}, 9\ns_add_u32 s{S_T0}, s{S_T0}, {AUX}")
    a(f"v_and_b32 v{VT+1}, 15, v{VLN}\nv_lshl_add_u32 v{VT+1}, v{VT+1}, 3, s{S_T0}")
    a(f"s_mul_i32 s{S_T1}, s{S_T1}, 448\ns_add_u32 s{S_T1}, s{S_T1}, {AUX2}")
    a(f"v_lshrrev_b32 v{VT+2}, 4, v{VLN}\nv_lshl_add_u32 v{VT+2}, v{VT+2}, 4, s{S_T1}")
    a("s_barrier")
    for i in range(c.mb): a(f"ds_read_b64 {vr(STt+2*i,2)}, v{VT+1} offset:{i*128}")
    for j in range(c.nb): a(f"ds_read_b128 {vr(CS+4*j,4)}, v{VT+2} offset:{j*64}")
    a("s_waitcnt lgkmcnt(0)")
    T8 = CK + 8
    def lnfold(i, blocks):
        k = 0
        for (b, j) in blocks:
            for u in (0, 2):
                a(f"v_pk_mul_f32 {vr(T8+2*k,2)}, {vr(CS+4*j+u,2)}, {vr(STt+2*i,2)} op_sel:[0,1] op_sel_hi:[1,1]"); k += 1
        k = 0
        for (b, j) in blocks:
            for u in (0, 2):
                a(f"v_pk_fma_f32 {vr(b+u,2)}, {vr(b+u,2)}, {vr(STt+2*i,2)}, {vr(T8+2*k,2)} op_sel_hi:[1,0,1] neg_lo:[0,0,1] neg_hi:[0,0,1]"); k += 1
    n = 0
    for i in range(c.mb):
        for j in range(0, 6, 2):
            b0, b1 = R.accb(i, j), R.accb(i, j + 1)
            lnfold(i, [(b0, j), (b1, j + 1)])
            gelu8(a, b0, b1, T8, CK, CK + 2)
            store_pair(a, b0, b1, CK + 16 + 4 * (n & 3), VO, S_WS, WS_H2 + i * 16 * 7168, j * 32); n += 1
    for i in range(0, c.mb, 2):
        b0, b1 = R.accb(i, 6), R.accb(i + 1, 6)
        lnfold(i, [(b0, 6)]); lnfold(i + 1, [(b1, 6)])
        gelu8(a, b0, b1, T8, CK, CK + 2)
        for k, b in enumerate((b0, b1)):
            q = CK + 16 + 4 * (n & 3); n += 1
            a(f"v_cvt_pk_bf16_f32 v{q}, v{b}, v{b+1}"); a(f"v_cvt_pk_bf16_f32 v{q+1}, v{b+2}, v{b+3}")
            a(f"s_mov_b32 s{S_T3}, {WS_H2 + (i+k)*16*7168}")
            a(f"buffer_store_dwordx2 {vr(q,2)}, v{VO2}, s[{S_WS}:{S_WS+3}], s{S_T3} offen offset:192 {SC}")
    if st: stamps_out(a, name, 0)
    a("s_endpgm")
    a(f"{LLD}:")
    emit_loader(a, c, "l3")
    VL = 1
    a(f"s_sub_u32 s{S_T0}, s{S_WAVE}, 4")
    a(f"s_mul_i32 s{S_T1}, s{S_T0}, 224\nv_lshl_add_u32 v6, v{VL}, 2, s{S_T1}")
    a(f"s_mul_i32 s{S_T2}, s{S_NT}, 896\ns_add_u32 s{S_T2}, s{S_T2}, {WS_CS3}")
    for ks in range(16):
        a(f"buffer_load_dword v{8+ks}, v6, s[{S_WS}:{S_WS+3}], s{S_T2} offen")
        a(f"s_add_u32 s{S_T2}, s{S_T2}, {3584*4}")
    LNS = a.label("l3_nost")
    a(f"s_cmp_ge_u32 s{S_T0}, 2\ns_cbranch_scc1 {LNS}")
    a(f"s_lshl_b32 s{S_T1}, s{S_T0}, 6\nv_add_u32 v2, s{S_T1}, v{VL}\nv_add_u32 v3, s{S_ROW0}, v2\nv_lshlrev_b32 v3, 7, v3")
    a(f"s_mov_b32 s{S_T2}, {WS_ST1}")
    for u in range(8): a(f"buffer_load_dwordx4 {vr(32+4*u,4)}, v3, s[{S_WS}:{S_WS+3}], s{S_T2} offen offset:{u*16}")
    a("s_waitcnt vmcnt(0)")
    a("v_mov_b32 v4, v32\nv_mov_b32 v5, v33")
    for g in range(1, 16): a(f"v_pk_add_f32 v[4:5], v[4:5], {vr(32+2*g,2)}")
    a(f"v_mul_f32 v4, {f2u(1/1024)}, v4      ; mean")
    for g in range(16):
        a(f"v_fma_f32 v7, v{32+2*g}, {1/64}, -v4" if False else f"v_mul_f32 v7, {f2u(1/64)}, v{32+2*g}")
        a("v_sub_f32 v7, v7, v4"); a("v_mul_f32 v7, v7, v7"); a(f"v_fmac_f32 v5, 64.0, v7" if False else f"v_fmac_f32 v5, {f2u(64.0)}, v7")
    a(f"v_mov_b32 v7, {f2u(1e-5)}\nv_fmac_f32 v7, {f2u(1/1024)}, v5\nv_rsq_f32 v5, v7\ns_nop 0")
    a("v_mul_f32 v7, v4, v5\nv_mov_b32 v4, v5\nv_mov_b32 v5, v7")
    a(f"v_lshlrev_b32 v2, 3, v2\nv_add_u32 v2, {AUX}, v2\nds_write_b64 v2, v[4:5]")
    a(f"{LNS}:")
    a("s_waitcnt vmcnt(0)")
    for w in (8, 4, 2, 1):
        for u in range(w): a(f"v_add_f32 v{8+u}, v{8+u}, v{8+u+w}")
    a(f"v_add_u32 v6, {AUX2}, v6")
    a("s_mov_b32 exec_hi, 0x00ffffff")
    a("ds_write_b32 v6, v8")
    a("s_mov_b64 exec, -1")
    a("s_waitcnt lgkmcnt(0)")
    a("s_barrier")
    a(f"L_{name}_end:\ns_endpgm")
    a(KD.format(name=name, vgpr=256))
    return f"; @launch kernel={name} grid=(256,1,1) block=(512,1,1) lds={lds}"

def gen_l4(a, st=False):
    name = "l4_kernel"
    c = Cfg(128, 64, 2, 2, 6, 56)
    lds = c.ring_bytes
    S_OUT = 40; S_MT = 57; S_NT = 58
    kernel_head(a, name)
    a("s_and_b32 s3, s2, 7\ns_lshr_b32 s4, s2, 3")
    a("s_lshr_b32 s5, s3, 1\ns_and_b32 s6, s3, 1")
    a("s_lshr_b32 s7, s4, 3\ns_and_b32 s4, s4, 7")
    a(f"s_lshl_b32 s5, s5, 2\ns_add_u32 s{S_MT}, s5, s7")
    a(f"s_lshl_b32 s6, s6, 3\ns_add_u32 s{S_NT}, s6, s4")
    a(f"s_lshl_b32 s{S_ROW0}, s{S_MT}, 7\ns_lshl_b32 s{S_CB}, s{S_NT}, 7")
    a(f"s_mov_b32 s{S_XSTR}, 7168\ns_mov_b32 s{S_KX}, 0\ns_mov_b32 s{S_KW}, 0")
    a(f"s_mov_b32 s{S_WSTR}, 2048\ns_mov_b32 s{S_CA}, 128\ns_mov_b32 s{S_CBB}, 64\ns_mov_b32 s{S_WSTEP}, {2048*64}")
    a("s_waitcnt lgkmcnt(0)")
    srd(a, S_WS, P_WS, 256 * MB)
    srd(a, S_XSRD, P_WS, 2048 * 7168, WS_H2)
    srd(a, S_WSRD, P_W4, 7 * MB)
    srd(a, S_OUT, P_OUT, 4 * MB)
    LLD = a.label("l4_ld")
    a(f"s_cmp_ge_u32 s{S_WAVE}, 4\ns_cbranch_scc1 {LLD}")
    R = CRegs(c, 0)
    VTID = R.free; VLN = VTID + 1; VO = VTID + 2; VT = VTID + 3
    AR = (VT + 8 + 3) // 4 * 4; XR = AR + 16; GR = XR + 16
    a(f"v_mov_b32 v{VTID}, v0"); a(f"v_and_b32 v{VLN}, 63, v0")
    if st: a("s_memtime s[90:91]")
    out_addr(a, c, VO, VLN, VT, S_ROW0, S_CB, 2048)
    for i in range(c.mb):
        a(f"s_mov_b32 s{S_T3}, {WS_A + i*16*2048}")
        a(f"buffer_load_dwordx4 {vr(AR+4*i,4)}, v{VO}, s[{S_WS}:{S_WS+3}], s{S_T3} offen")
        a(f"s_mov_b32 s{S_T3}, {WS_X1 + i*16*2048}")
        a(f"buffer_load_dwordx4 {vr(XR+4*i,4)}, v{VO}, s[{S_WS}:{S_WS+3}], s{S_T3} offen")
    a(f"v_and_b32 v{VT}, 15, v{VLN}\nv_add_u32 v{VT}, s{S_T0}, v{VT}\nv_lshlrev_b32 v{VT}, 4, v{VT}")
    a(f"s_mov_b32 s{S_T3}, {WS_STAT}")
    for i in range(c.mb): a(f"buffer_load_dword v{GR+2*i}, v{VT}, s[{S_WS}:{S_WS+3}], s{S_T3} offen offset:{8+i*256}")
    emit_compute_setup(a, c, R, VTID, VT)
    for r in range(c.mb * c.nb * 4): a(f"v_mov_b32 v{r}, 0")
    emit_mainloop(a, c, R, "l4", wfirst=True, stamp="s_memtime s[92:93]" if st else None)
    if st: a("s_memtime s[94:95]")
    CK = R.frag0
    a("s_waitcnt vmcnt(0)\ns_nop 4")
    for i in range(c.mb):
        b0, b1 = R.accb(i, 0), R.accb(i, 1)
        a(f"v_sub_f32 v{GR+2*i+1}, 1.0, v{GR+2*i}")
        unswap_unpack(a, XR + 4 * i, CK, CK + 4)
        unswap_unpack(a, AR + 4 * i, CK + 8, CK + 12)
        for k, p in enumerate((b0, b0 + 2, b1, b1 + 2)):
            a(f"v_pk_add_f32 {vr(p,2)}, {vr(p,2)}, {vr(CK+2*k,2)}")
            a(f"v_pk_mul_f32 {vr(CK+8+2*k,2)}, {vr(CK+8+2*k,2)}, {vr(GR+2*i,2)} op_sel_hi:[1,0]")
        for k, p in enumerate((b0, b0 + 2, b1, b1 + 2)):
            a(f"v_pk_fma_f32 {vr(p,2)}, {vr(p,2)}, {vr(GR+2*i,2)}, {vr(CK+8+2*k,2)} op_sel:[0,1,0] op_sel_hi:[1,1,1]")
        store_pair(a, b0, b1, CK + 16 + 4 * (i & 3), VO, S_OUT, i * 16 * 2048, 0)
    if st: stamps_out(a, name, 0)
    a("s_endpgm")
    a(f"{LLD}:")
    emit_loader(a, c, "l4")
    a(f"L_{name}_end:\ns_endpgm")
    a(KD.format(name=name, vgpr=256))
    return f"; @launch kernel={name} grid=(256,1,1) block=(512,1,1) lds={lds}"
```

```python
import gen, sys
hdr = open('gated_mix__linear_attn_block__mixer_s_mlp__prompt.s.ref').read().split("\n")
head = [l for l in hdr if l.startswith(";") and "@launch" not in l and "Override" not in l and "grid=ceil" not in l]
s = gen.build(gen.KERNELS if hasattr(gen, "KERNELS") else [gen.gen_l1, gen.gen_l2, gen.gen_l3, gen.gen_l4], st=False)
out = "\n".join(head) + "\n" + s
path = sys.argv[1] if len(sys.argv) > 1 else 'gated_mix__linear_attn_block__mixer_s_mlp__prompt.s'
open(path, 'w').write(out)
```

```python
import re
class Asm:
    def __init__(self):
        self.o = []; self.lab = 0
    def __call__(self, s):
        for line in s.split("\n"):
            m = re.search(r"offset:(\d+)", line)
            if m:
                lim = 4095 if line.lstrip().startswith("buffer_") else 65535
                assert int(m.group(1)) <= lim, line
        self.o.append(s)
    def label(self, base):
        self.lab += 1
        return f"L_{base}_{self.lab}"
    def text(self):
        return "\n".join(self.o) + "\n"

def vr(b, n=1): return f"v{b}" if n == 1 else f"v[{b}:{b+n-1}]"
def sr(b, n=1): return f"s{b}" if n == 1 else f"s[{b}:{b+n-1}]"
def log2(x):
    assert x & (x - 1) == 0, x
    return x.bit_length() - 1
MFMA = "v_mfma_f32_16x16x32_bf16"

KD = '''.section .rodata,"a"
.p2align 6
.amdhsa_kernel {name}
  .amdhsa_next_free_vgpr {vgpr}
  .amdhsa_next_free_sgpr 102
  .amdhsa_accum_offset {vgpr}
  .amdhsa_group_segment_fixed_size 0
  .amdhsa_kernarg_size 96
  .amdhsa_user_sgpr_count 2
  .amdhsa_user_sgpr_kernarg_segment_ptr 1
  .amdhsa_system_sgpr_workgroup_id_x 1
.end_amdhsa_kernel
.text
'''

class Cfg:
    ST2 = False
    def __init__(self, TM, TN, WM, WN, nst, S, extra=0, wmode=None):
        self.TM, self.TN, self.WM, self.WN, self.nst, self.S = TM, TN, WM, WN, nst, S
        self.BK = 64; self.BS = 16; self.KS = 32; self.steps = 2
        assert WM * WN == 4
        self.wtm = TM // WM; self.wtn = TN // WN
        self.mb = self.wtm // 16; self.nb = self.wtn // 16
        assert self.mb * 16 == self.wtm and self.nb * 16 == self.wtn
        self.xbytes = TM * 128
        self.wrow = TN * 2
        self.wbytes = 64 * self.wrow
        self.extra = extra
        self.xi = self.xbytes // 1024; self.wi = self.wbytes // 1024
        assert self.xi % 4 == 0 and self.wi % 4 == 0
        self.wmode = wmode
        self.st2 = Cfg.ST2
        self.jmap = [(j * 32, self.wtn * 2) for j in range(self.nb)]
        self.stage_bytes = self.xbytes + self.wbytes + self.extra
        self.ring_bytes = self.stage_bytes * self.nst

S_XSRD, S_WSRD = 8, 12
S_WAVE = 20
S_ROW0 = 21; S_CB = 22; S_CA = 23; S_CBB = 24; S_WSTR = 25; S_XSTR = 26
S_KX = 27; S_KW = 28; S_CNT = 29; S_SLOT = 30
S_T0, S_T1, S_T2, S_T3 = 31, 32, 33, 34
S_WSTEP = 35; S_XL = 36; S_WL = 37; S_DELTA = 38; S_KE = 39
S_ROT = 3

def emit_wswz_g(a, c, vd, vk, vt):
    w = c.wrow
    if c.wmode == "k7":
        assert w % 256 == 0
        a(f"v_and_b32 v{vd}, 7, v{vk}"); a(f"v_lshlrev_b32 v{vd}, 1, v{vd}")
    elif w % 256 == 0:
        a(f"v_and_b32 v{vd}, 3, v{vk}"); a(f"v_bfe_u32 v{vt}, v{vk}, 3, 1")
        a(f"v_lshl_or_b32 v{vd}, v{vt}, 2, v{vd}"); a(f"v_lshlrev_b32 v{vd}, 1, v{vd}")
    elif w % 256 == 128:
        a(f"v_bfe_u32 v{vd}, v{vk}, 1, 1"); a(f"v_bfe_u32 v{vt}, v{vk}, 3, 1")
        a(f"v_lshl_or_b32 v{vd}, v{vt}, 1, v{vd}"); a(f"v_lshlrev_b32 v{vd}, 1, v{vd}")
    else:
        assert w % 128 == 64
        a(f"v_bfe_u32 v{vd}, v{vk}, 3, 1"); a(f"v_lshlrev_b32 v{vd}, 1, v{vd}")

def emit_loader(a, c, name, xshift=None, esrd=None, first=None, tail=None, switch=None):
    xpw = c.xi // 4; wpw = c.wi // 4
    VL, VT, VR, VG, VM, VE = 1, 2, 3, 4, 5, 6
    VX = 10; VW = VX + xpw; VX2 = VW + wpw
    a(f"v_and_b32 v{VL}, 63, v0")
    a(f"s_sub_u32 s{S_T0}, s{S_WAVE}, 4")
    if not switch:
        a(f"s_lshl_b32 s{S_KX}, s{S_ROT}, 7")
        a(f"s_mul_i32 s{S_KW}, s{S_ROT}, s{S_WSTEP}")
        a(f"s_lshl_b32 s{S_KE}, s{S_ROT}, 12")
    else:
        a(f"s_mov_b32 s{S_KE}, 0")
        a(f"s_mov_b32 s4, s{S_KX}\ns_mov_b32 s5, s{S_KW}\ns_mov_b32 s6, 0")
    if xshift:
        a(f"s_lshr_b32 s{S_T1}, s{S_ROT}, 2")
        a(f"s_mov_b32 s{S_DELTA}, {xshift[0] & 0xffffffff}")
        for b in range(1, 4):
            a(f"s_cmp_eq_u32 s{S_T1}, {b}"); a(f"s_cmov_b32 s{S_DELTA}, {xshift[b] & 0xffffffff}")
    gpr = c.wrow // 16
    for ii in range(wpw):
        a(f"s_mul_i32 s{S_T1}, s{S_T0}, {wpw*64}")
        a(f"s_add_u32 s{S_T1}, s{S_T1}, {ii*64}")
        a(f"v_add_u32 v{VT}, s{S_T1}, v{VL}")
        if gpr & (gpr - 1) == 0:
            a(f"v_lshrrev_b32 v{VR}, {log2(gpr)}, v{VT}")
            a(f"v_and_b32 v{VG}, {gpr-1}, v{VT}")
        else:
            magic = (1 << 20) // gpr + 1
            for G in range(64 * gpr): assert (G * magic) >> 20 == G // gpr
            a(f"s_mov_b32 s{S_T2}, {magic}")
            a(f"v_mul_lo_u32 v{VR}, v{VT}, s{S_T2}")
            a(f"v_lshrrev_b32 v{VR}, 20, v{VR}")
            a(f"v_mul_u32_u24 v{VG}, {gpr}, v{VR}")
            a(f"v_sub_u32 v{VG}, v{VT}, v{VG}")
        emit_wswz_g(a, c, VM, VR, VT)
        a(f"v_xor_b32 v{VG}, v{VG}, v{VM}")
        a(f"v_mul_lo_u32 v{VR}, v{VR}, s{S_WSTR}")
        a(f"v_lshrrev_b32 v{VT}, 3, v{VG}")
        a(f"v_mul_lo_u32 v{VT}, v{VT}, s{S_CA}")
        a(f"v_add_u32 v{VR}, v{VR}, v{VT}")
        a(f"v_bfe_u32 v{VT}, v{VG}, 2, 1")
        a(f"v_mul_lo_u32 v{VT}, v{VT}, s{S_CBB}")
        a(f"v_add_u32 v{VR}, v{VR}, v{VT}")
        a(f"v_and_b32 v{VT}, 3, v{VG}")
        a(f"v_lshl_add_u32 v{VR}, v{VT}, 4, v{VR}")
        a(f"v_add_u32 v{VW+ii}, s{S_CB}, v{VR}")
    for ii in range(xpw):
        if ii >= 2:
            a(f"s_lshl_b32 s{S_T1}, s{S_XSTR}, 4")
            a(f"v_add_u32 v{VX+ii}, s{S_T1}, v{VX+ii-2}")
            if switch: a(f"v_add_u32 v{VX2+ii}, {switch['xstr']*16}, v{VX2+ii-2}")
            continue
        a(f"s_mul_i32 s{S_T1}, s{S_T0}, {xpw*8}")
        a(f"s_add_u32 s{S_T1}, s{S_T1}, {ii*8}")
        a(f"v_lshrrev_b32 v{VR}, 3, v{VL}")
        a(f"v_add_u32 v{VR}, s{S_T1}, v{VR}")
        a(f"v_bfe_u32 v{VM}, v{VR}, 1, 3")
        a(f"v_and_b32 v{VG}, 7, v{VL}")
        a(f"v_xor_b32 v{VG}, v{VG}, v{VM}")
        a(f"v_add_u32 v{VR}, s{S_ROW0}, v{VR}")
        if xshift: a(f"v_add_u32 v{VR}, s{S_DELTA}, v{VR}")
        if switch:
            a(f"v_mul_u32_u24 v{VT}, {switch['xstr']}, v{VR}")
            a(f"v_lshl_add_u32 v{VX2+ii}, v{VG}, 4, v{VT}")
        a(f"v_mul_lo_u32 v{VR}, v{VR}, s{S_XSTR}")
        a(f"v_lshl_add_u32 v{VX+ii}, v{VG}, 4, v{VR}")
    if esrd is not None:
        a(f"s_lshl_b32 s{S_T1}, s{S_T0}, 10")
        a(f"v_lshl_add_u32 v{VE}, v{VL}, 4, s{S_T1}")
    a(f"s_mul_i32 s{S_XL}, s{S_T0}, {xpw*1024}")
    a(f"s_mul_i32 s{S_WL}, s{S_T0}, {wpw*1024}")
    a(f"s_add_u32 s{S_WL}, s{S_WL}, {c.xbytes}")
    a(f"s_mov_b32 s{S_SLOT}, 0")
    seq = []
    for ii in range(max(xpw, wpw)):
        if ii < wpw: seq.append(("w", ii))
        if ii < xpw: seq.append(("x", ii))
    if esrd is not None: seq.append(("e", 0))
    n = len(seq)
    def issue():
        if switch:
            wn = switch['win']
            a(f"s_add_u32 s{S_T1}, s6, s{S_ROT}"); a(f"s_and_b32 s{S_T1}, s{S_T1}, {wn-1}")
            a(f"s_andn2_b32 s{S_T2}, s6, {wn-1}"); a(f"s_or_b32 s{S_T1}, s{S_T1}, s{S_T2}")
            a(f"s_lshl_b32 s{S_KX}, s{S_T1}, 7"); a(f"s_add_u32 s{S_KX}, s{S_KX}, s4")
            a(f"s_mul_i32 s{S_KW}, s{S_T1}, s{S_WSTEP}"); a(f"s_add_u32 s{S_KW}, s{S_KW}, s5")
            a("s_add_u32 s6, s6, 1")
        a(f"s_add_u32 s{S_T1}, s{S_SLOT}, s{S_XL}")
        a(f"s_add_u32 s{S_T2}, s{S_SLOT}, s{S_WL}")
        for kind, ii in seq:
            if kind == "x":
                a(f"s_add_u32 m0, s{S_T1}, {ii*1024}"); a("s_nop 0")
                a(f"buffer_load_dwordx4 v{VX+ii}, s[{S_XSRD}:{S_XSRD+3}], s{S_KX} offen {getattr(c,'xflag','')} lds")
            elif kind == "w":
                a(f"s_add_u32 m0, s{S_T2}, {ii*1024}"); a("s_nop 0")
                a(f"buffer_load_dwordx4 v{VW+ii}, s[{S_WSRD}:{S_WSRD+3}], s{S_KW} offen {getattr(c,'wflag','')} lds")
            else:
                a(f"s_lshl_b32 s{S_T3}, s{S_T0}, 10")
                a(f"s_add_u32 s{S_T3}, s{S_T3}, s{S_SLOT}")
                a(f"s_add_u32 m0, s{S_T3}, {c.xbytes+c.wbytes}"); a("s_nop 0")
                a(f"buffer_load_dwordx4 v{VE}, s[{esrd}:{esrd+3}], s{S_KE} offen lds")
                a(f"s_add_u32 s{S_KE}, s{S_KE}, 4096")
        a(f"s_add_u32 s{S_KX}, s{S_KX}, 128")
        a(f"s_add_u32 s{S_KW}, s{S_KW}, s{S_WSTEP}")
        a(f"s_add_u32 s{S_SLOT}, s{S_SLOT}, {c.stage_bytes}")
        a(f"s_cmp_ge_u32 s{S_SLOT}, {c.ring_bytes}")
        a(f"s_cselect_b32 s{S_SLOT}, 0, s{S_SLOT}")
        if xshift:
            LN = a.label(name + "_nosh")
            a(f"s_and_b32 s{S_T1}, s{S_KX}, 511"); a(f"s_cmp_lg_u32 s{S_T1}, 0"); a(f"s_cbranch_scc1 {LN}")
            d = [(xshift[(b + 1) % 4] - xshift[b]) for b in range(4)]
            a(f"s_mov_b32 s{S_T1}, {d[0] & 0xffffffff}")
            for b in range(1, 4):
                a(f"s_cmp_eq_u32 s{S_KX}, {512*(b+1)}"); a(f"s_cmov_b32 s{S_T1}, {d[b] & 0xffffffff}")
            a(f"s_mul_i32 s{S_T1}, s{S_T1}, s{S_XSTR}")
            for ii in range(xpw): a(f"v_add_u32 v{VX+ii}, s{S_T1}, v{VX+ii}")
            a(f"{LN}:")
        if not switch:
            a(f"s_cmp_eq_u32 s{S_KX}, {c.S*128}")
            a(f"s_cmov_b32 s{S_KX}, 0"); a(f"s_cmov_b32 s{S_KW}, 0"); a(f"s_cmov_b32 s{S_KE}, 0")
        else:
            LN = a.label(name + "_nosw")
            a(f"s_add_u32 s{S_KE}, s{S_KE}, 1")
            a(f"s_cmp_lg_u32 s{S_KE}, s{switch['s_at']}"); a(f"s_cbranch_scc1 {LN}")
            for u in range(3):
                a(f"s_mov_b32 s{S_XSRD+u}, s{switch['xsrd']+u}"); a(f"s_mov_b32 s{S_WSRD+u}, s{switch['wsrd']+u}")
            a("s_mov_b32 s4, 0\ns_mov_b32 s5, 0\ns_mov_b32 s6, 0")
            for ii in range(xpw): a(f"v_mov_b32 v{VX+ii}, v{VX2+ii}")
            a(f"{LN}:")
    nfirst = 0
    if getattr(c, "st2", False): a("s_memtime s[90:91]")
    if first: nfirst = first()
    issued = 0
    def upto(k):
        nonlocal issued
        while issued < k: issue(); issued += 1
    upto(min(c.nst - 1, 2))
    if getattr(c, "prebar", False): a("s_barrier")
    s = 0
    if getattr(c, "st2", False):
        LX = a.label(name + "_st2")
        a("s_memtime s[92:93]")
        a(f"s_waitcnt vmcnt({n*(issued-1)})")
        a("s_memtime s[94:95]\ns_waitcnt lgkmcnt(0)")
        a("v_mov_b32 v60, s88\nv_mov_b32 v61, s90\nv_mov_b32 v62, s92\nv_mov_b32 v63, s94")
        a(f"s_lshl_b32 s{S_T1}, s2, 4\ns_add_u32 s{S_T1}, s{S_T1}, {65<<20}\nv_mov_b32 v59, s{S_T1}")
        a(f"s_cmp_lg_u32 s{S_WAVE}, 4\ns_cbranch_scc1 {LX}")
        a("buffer_store_dwordx4 v[60:63], v59, s[16:19], 0 offen")
        a("s_waitcnt vmcnt(0)")
        a(f"{LX}:")
    while issued < s + c.nst - 1:
        a(f"s_waitcnt vmcnt({n*(issued-1-s)})")
        a("s_barrier")
        upto(min(s + c.nst, issued + 2))
        s += 1
    nloop = c.S - (c.nst - 1) - s
    L = a.label(name + "_ld")
    a(f"s_mov_b32 s{S_CNT}, 0")
    a(f"{L}:")
    a(f"s_waitcnt vmcnt({n*(c.nst-2)})")
    a("s_barrier")
    issue()
    a(f"s_add_u32 s{S_CNT}, s{S_CNT}, 1")
    a(f"s_cmp_lt_u32 s{S_CNT}, {nloop}")
    a(f"s_cbranch_scc1 {L}")
    nt = tail() if tail else 0
    for r in range(c.nst - 2, -1, -1):
        a(f"s_waitcnt vmcnt({min(63, n*r + nt)})")
        a("s_barrier")

class CRegs:
    def __init__(self, c, base=0):
        self.acc = base
        p = base + c.mb * c.nb * 4
        self.xf = [[p + (b * c.mb + i) * 4 for i in range(c.mb)] for b in range(2)]
        p += 2 * c.mb * 4
        self.wf = [[p + (b * c.nb + j) * 4 for j in range(c.nb)] for b in range(2)]
        p += 2 * c.nb * 4
        self.frag0 = self.xf[0][0]; self.frag_end = p
        self.xa = [p, p + 1]; p += 2
        self.wa = [p + j for j in range(c.nb)]; p += c.nb
        self.free = p
        self.nb = c.nb
    def accb(self, i, j): return self.acc + (i * self.nb + j) * 4

def emit_compute_setup(a, c, R, vtid, vt):
    VL, VA, VB, VC, VD = vt, vt + 1, vt + 2, vt + 3, vt + 4
    a(f"v_and_b32 v{VL}, 63, v{vtid}")
    a(f"s_lshr_b32 s{S_T0}, s{S_WAVE}, {log2(c.WN)}")
    a(f"s_and_b32 s{S_T1}, s{S_WAVE}, {c.WN-1}")
    a(f"v_and_b32 v{VA}, 15, v{VL}")
    a(f"s_mul_i32 s{S_T2}, s{S_T0}, {c.wtm}")
    a(f"v_add_u32 v{VA}, s{S_T2}, v{VA}")
    a(f"v_bfe_u32 v{VB}, v{VA}, 1, 3")
    a(f"v_lshrrev_b32 v{VC}, 4, v{VL}")
    a(f"v_xor_b32 v{VB}, v{VB}, v{VC}")
    a(f"v_lshlrev_b32 v{VB}, 4, v{VB}")
    a(f"v_lshl_add_u32 v{R.xa[0]}, v{VA}, 7, v{VB}")
    a(f"v_xor_b32 v{R.xa[1]}, 64, v{R.xa[0]}")
    a(f"v_lshrrev_b32 v{VA}, 4, v{VL}")
    a(f"v_bfe_u32 v{VB}, v{VL}, 2, 2")
    a(f"v_and_b32 v{VC}, 3, v{VL}")
    a(f"v_lshl_add_u32 v{VD}, v{VA}, {2 if c.wmode == 'k7' else 3}, v{VB}")
    a(f"v_lshlrev_b32 v{VC}, 3, v{VC}")
    emit_wswz_g(a, c, VA, VD, VB)
    a(f"v_lshlrev_b32 v{VA}, 4, v{VA}")
    a(f"v_mul_u32_u24 v{VD}, {c.wrow}, v{VD}")
    a(f"v_add_u32 v{VD}, {c.xbytes}, v{VD}")
    for j in range(c.nb):
        a(f"s_mul_i32 s{S_T2}, s{S_T1}, {c.jmap[j][1]}")
        a(f"s_add_u32 s{S_T2}, s{S_T2}, {c.jmap[j][0]}")
        a(f"v_add_u32 v{VB}, s{S_T2}, v{VC}")
        a(f"v_xor_b32 v{VB}, v{VB}, v{VA}")
        a(f"v_add_u32 v{R.wa[j]}, v{VB}, v{VD}")

def rset(b, n=4): return set(range(b, b + n))

def frag_reads(c, R, t, buf):
    xs = [(f"ds_read_b128 {vr(R.xf[buf][i],4)}, v{R.xa[t]} offset:{i*2048}", rset(R.xf[buf][i])) for i in range(c.mb)]
    ws = []
    for j in range(c.nb):
        for h in range(2):
            koff = t * 32 + (16 * h if c.wmode == "k7" else 4 * h)
            b = R.wf[buf][j] + 2 * h
            ws.append((f"ds_read_b64_tr_b16 {vr(b,2)}, v{R.wa[j]} offset:{koff*c.wrow}", {b, b + 1}))
    return ws[:2] + xs[:1] + ws[2:] + xs[1:]

class Lds:
    def __init__(self, a):
        self.a = a; self.ops = []; self.done = 0
    def op(self, instr, dest=frozenset()):
        self.a(instr); self.ops.append(set(dest))
    def need(self, regs):
        idx = -1
        for i in range(len(self.ops) - 1, self.done - 1, -1):
            if self.ops[i] & regs: idx = i; break
        if idx < 0: return
        n = min(len(self.ops) - 1 - idx, 15)
        self.a(f"s_waitcnt lgkmcnt({n})")
        self.done = len(self.ops) - n
    def drain(self):
        if self.done < len(self.ops):
            self.a("s_waitcnt lgkmcnt(0)"); self.done = len(self.ops)

def emit_mainloop(a, c, R, name, wfirst=True, bar_at=None, stamp=None, hooks=None, periodic=None):
    nm = c.mb * c.nb
    if bar_at is None: bar_at = nm // 4
    T = Lds(a)
    def mfmas(buf):
        l = []
        for i in range(c.mb):
            for j in range(c.nb):
                acc = vr(R.accb(i, j), 4)
                A, B = (R.wf[buf][j], R.xf[buf][i]) if wfirst else (R.xf[buf][i], R.wf[buf][j])
                l.append((f"{MFMA} {acc}, {vr(A,4)}, {vr(B,4)}, {acc}", rset(A) | rset(B)))
        return l
    def emit_step(buf, slots):
        for mi, (m, regs) in enumerate(mfmas(buf)):
            T.need(regs); a(m)
            for x in slots.get(mi, []):
                if callable(x): x()
                elif isinstance(x, tuple): T.op(*x)
                elif x: a(x)
    def place(slots, instrs, start, per=1):
        p = start; k = 0
        for x in instrs:
            slots.setdefault(min(p, nm - 1), []).append(x)
            k += 1
            if k % per == 0: p += 1
        return p
    adv = [f"s_add_u32 s{S_SLOT}, s{S_SLOT}, 1",
           f"s_cmp_eq_u32 s{S_SLOT}, {c.nst}",
           f"s_cselect_b32 s{S_SLOT}, 0, s{S_SLOT}",
           f"s_mov_b32 s{S_DELTA}, {c.stage_bytes}",
           f"s_cmov_b32 s{S_DELTA}, {-(c.nst-1)*c.stage_bytes & 0xffffffff}",
           f"s_add_u32 s{S_CNT}, s{S_CNT}, 1"]
    def stage(last):
        slots = {}
        rd = frag_reads(c, R, 1, 1)
        oth = [] if last else adv + [f"v_add_u32 v{r}, s{S_DELTA}, v{r}" for r in R.xa + R.wa]
        tot = len(rd) + len(oth)
        per = 1 if tot <= nm else (2 if tot <= 2 * nm else 3)
        p = place(slots, rd, 0, per)
        place(slots, oth, p, per)
        emit_step(0, slots)
        slots = {}
        if not last:
            def sync():
                T.drain(); a("s_barrier")
            p = place(slots, [sync], bar_at)
            rd = frag_reads(c, R, 0, 0)
            per = 1 if len(rd) + p <= nm else (2 if len(rd) + 2 * p <= 2 * nm else 3)
            place(slots, rd, p - 1, per)
        emit_step(1, slots)
    a(f"s_mov_b32 s{S_SLOT}, 0")
    a(f"s_mov_b32 s{S_CNT}, 1")
    a("s_barrier")
    if stamp: a(stamp); a("s_waitcnt lgkmcnt(0)")
    for r in frag_reads(c, R, 0, 0): T.op(*r)
    entry = [set(x) for x in T.ops]
    L = a.label(name + "_mm")
    a(".p2align 6")
    a(f"{L}:")
    if periodic:
        mask, val, limit, fn = periodic
        LH = a.label(name + "_pk")
        a(f"s_and_b32 s{S_T3}, s{S_CNT}, {mask}"); a(f"s_cmp_lg_u32 s{S_T3}, {val}"); a(f"s_cbranch_scc1 {LH}")
        a(f"s_cmp_ge_u32 s{S_CNT}, {limit}"); a(f"s_cbranch_scc1 {LH}")
        fn()
        a(f"{LH}:")
    for (at, fn) in (hooks or []):
        LH = a.label(name + "_hk")
        a(f"s_cmp_lg_u32 s{S_CNT}, {at}"); a(f"s_cbranch_scc1 {LH}")
        fn()
        a(f"{LH}:")
    stage(False)
    assert T.ops[len(T.ops) - len(entry):] == entry
    T.ops = [set(x) for x in entry]; T.done = 0
    a(f"s_cmp_lt_u32 s{S_CNT}, {c.S}")
    a(f"s_cbranch_scc1 {L}")
    stage(True)
```

```python
from core2 import *
import struct
def f2u(x): return struct.unpack("<I", struct.pack("<f", x))[0]
MB = 1 << 20
WS_PQ = 0; WS_H = 4*MB; WS_A = 8*MB; WS_X1 = 12*MB; WS_H2 = 16*MB
WS_KVP = 32*MB
KVP_STRIDE = 4352
WS_KVA = 34*MB
WS_KVZ = 34*MB + 65536
WS_STAT = 35*MB
WS_CS1 = 35*MB + 65536
WS_CS3 = 35*MB + 262144
WS_ST1 = 36*MB
LOG2E = 1.4426950408889634
GC0 = -2.0 * 0.7978845608028654 * LOG2E
GC1 = GC0 * 0.044715
P_X, P_WQKV, P_WO, P_BX, P_W1, P_W2, P_W3, P_W4, P_GATE, P_OUT, P_DBG, P_WS = [64 + 2 * i for i in range(12)]
S_WS = 16
SC = "sc0 sc1"
PF4_N0 = 1
PFFLAG = ""
FL = {}
PF1 = []
TAILPF = True
ROT = {1: (4, 2), 2: (0, 0), 3: (0, 0), 4: (0, 0)}
WIN4 = 4
S_PF = 44; S_PFO = 48; S_PFS = 49
def pf_touch(a, vd, va, flag=None):
    a(f"buffer_load_dword v{vd}, v{va}, s[{S_PF}:{S_PF+3}], s{S_PFO} offen {PFFLAG if flag is None else flag}")
    a(f"s_add_u32 s{S_PFO}, s{S_PFO}, s{S_PFS}")

def srd(a, d, p, size, off=0):
    if off:
        a(f"s_add_u32 s{d}, s{p}, {off}"); a(f"s_addc_u32 s{d+1}, s{p+1}, 0")
    else:
        a(f"s_mov_b32 s{d}, s{p}"); a(f"s_mov_b32 s{d+1}, s{p+1}")
    a(f"s_mov_b32 s{d+2}, {size}"); a(f"s_mov_b32 s{d+3}, 0x20000")

ST2 = False
def kernel_head(a, name):
    a(f".globl {name}\n.p2align 8\n.type {name},@function\n{name}:")
    if ST2: a("s_memtime s[88:89]")
    a(f"s_cmp_ge_u32 s2, 256\ns_cbranch_scc1 L_{name}_end")
    a("s_load_dwordx16 s[64:79], s[0:1], 0")
    a("s_load_dwordx8 s[80:87], s[0:1], 64")
    a(f"v_lshrrev_b32 v1, 6, v0\ns_nop 0\nv_readfirstlane_b32 s{S_WAVE}, v1")

def unpack8(a, src, dst):
    for u in range(4):
        a(f"v_lshlrev_b32 v{dst+2*u}, 16, v{src+u}")
        a(f"v_and_b32 v{dst+2*u+1}, 0xffff0000, v{src+u}")

def allreduce(a, regs, tmps, lo=0):
    DP = ["quad_perm:[1,0,3,2]", "quad_perm:[2,3,0,1]", "row_half_mirror", "row_mirror"]
    pad = max(0, 3 - len(regs))
    for lv in range(lo, 4):
        mod = DP[lv] if lo == 0 else ["quad_perm:[1,0,3,2]", "quad_perm:[2,3,0,1]", "row_ror:4", "row_ror:8"][lv]
        if pad: a(f"s_nop {pad-1}")
        for r in regs: a(f"v_add_f32_dpp v{r}, v{r}, v{r} {mod} row_mask:0xf bank_mask:0xf")
    for ins in ("v_permlane16_swap_b32", "v_permlane32_swap_b32"):
        for r, t in zip(regs, tmps): a(f"v_mov_b32 v{t}, v{r}")
        a("s_nop 1")
        for r, t in zip(regs, tmps): a(f"{ins} v{r}, v{t}")
        a("s_nop 1")
        for r, t in zip(regs, tmps): a(f"v_add_f32 v{r}, v{r}, v{t}")

def colsum_block(a, srd_w, wstride, s_row0, s_colb, s_dst, vl, base, part=3):
    VA = base; L = base + 4; F = base + 40; ACC = base + 48; TM = base + 56
    if part & 1:
        a(f"v_lshrrev_b32 v{VA}, 3, v{vl}")
        a(f"v_add_u32 v{VA}, s{s_row0}, v{VA}")
        a(f"v_mul_u32_u24 v{VA}, {wstride}, v{VA}")
        a(f"v_and_b32 v{VA+1}, 7, v{vl}")
        a(f"v_lshl_add_u32 v{VA}, v{VA+1}, 4, v{VA}")
        a(f"v_add_u32 v{VA}, s{s_colb}, v{VA}")
        for it in range(8):
            a(f"s_mov_b32 s{S_T3}, {it*8*wstride}")
            a(f"buffer_load_dwordx4 {vr(L+4*it,4)}, v{VA}, s[{srd_w}:{srd_w+3}], s{S_T3} offen {CSFLAG}")
    if not part & 2: return
    for it in range(8):
        if part == 3: a(f"s_waitcnt vmcnt({7-it})")
        if it == 0: unpack8(a, L, ACC)
        else:
            unpack8(a, L + 4 * it, F)
            for u in range(0, 8, 2): a(f"v_pk_add_f32 {vr(ACC+u,2)}, {vr(ACC+u,2)}, {vr(F+u,2)}")
    allreduce(a, list(range(ACC, ACC + 8)), list(range(TM, TM + 8)), lo=3)
    a(f"v_lshlrev_b32 v{VA}, 5, v{vl}")
    a("s_mov_b64 exec, 0xff")
    a(f"buffer_store_dwordx4 {vr(ACC,4)}, v{VA}, s[{S_WS}:{S_WS+3}], s{s_dst} offen {SC}")
    a(f"buffer_store_dwordx4 {vr(ACC+4,4)}, v{VA}, s[{S_WS}:{S_WS+3}], s{s_dst} offen offset:16 {SC}")
    a("s_mov_b64 exec, -1")

def out_addr(a, c, vo, vl, vt, s_row0, s_colb, ostride, wnb=None):
    a(f"s_lshr_b32 s{S_T0}, s{S_WAVE}, {log2(c.WN)}")
    a(f"s_and_b32 s{S_T1}, s{S_WAVE}, {c.WN-1}")
    a(f"s_mul_i32 s{S_T0}, s{S_T0}, {c.wtm}"); a(f"s_add_u32 s{S_T0}, s{S_T0}, s{s_row0}")
    a(f"s_mul_i32 s{S_T1}, s{S_T1}, {wnb or c.wtn*2}"); a(f"s_add_u32 s{S_T1}, s{S_T1}, s{s_colb}")
    a(f"v_and_b32 v{vo}, 15, v{vl}"); a(f"v_add_u32 v{vo}, s{S_T0}, v{vo}")
    a(f"v_mul_u32_u24 v{vo}, {ostride}, v{vo}")
    a(f"v_add_u32 v{vo}, s{S_T1}, v{vo}")
    a(f"v_bfe_u32 v{vt}, v{vl}, 5, 1"); a(f"v_lshl_add_u32 v{vo}, v{vt}, 4, v{vo}")
    a(f"v_bfe_u32 v{vt}, v{vl}, 4, 1"); a(f"v_lshl_add_u32 v{vo}, v{vt}, 5, v{vo}")

def store_pair(a, b0, b1, q, vo, srd_o, soff, imm):
    a(f"v_cvt_pk_bf16_f32 v{q}, v{b0}, v{b0+1}"); a(f"v_cvt_pk_bf16_f32 v{q+1}, v{b0+2}, v{b0+3}")
    a(f"v_cvt_pk_bf16_f32 v{q+2}, v{b1}, v{b1+1}"); a(f"v_cvt_pk_bf16_f32 v{q+3}, v{b1+2}, v{b1+3}")
    a(f"s_mov_b32 s{S_T3}, {soff}"); a("s_nop 0")
    a(f"v_permlane16_swap_b32 v{q}, v{q+2}"); a(f"v_permlane16_swap_b32 v{q+1}, v{q+3}")
    a(f"buffer_store_dwordx4 {vr(q,4)}, v{vo}, s[{srd_o}:{srd_o+3}], s{S_T3} offen offset:{imm} {SC}")

def gelu8(a, b0, b1, T, VC1, VC0):
    P = [b0, b0 + 2, b1, b1 + 2]
    for k, p in enumerate(P): a(f"v_pk_mul_f32 {vr(T+2*k,2)}, {vr(p,2)}, {vr(p,2)}")
    for k, p in enumerate(P): a(f"v_pk_fma_f32 {vr(T+2*k,2)}, {vr(T+2*k,2)}, {vr(VC1,2)}, {vr(VC0,2)}")
    for k, p in enumerate(P): a(f"v_pk_mul_f32 {vr(T+2*k,2)}, {vr(T+2*k,2)}, {vr(p,2)}")
    for k in range(8): a(f"v_exp_f32 v{T+k}, v{T+k}")
    for k in range(4): a(f"v_pk_add_f32 {vr(T+2*k,2)}, {vr(T+2*k,2)}, 1.0 op_sel_hi:[1,0]")
    for k in range(8): a(f"v_rcp_f32 v{T+k}, v{T+k}")
    for k, p in enumerate(P): a(f"v_pk_mul_f32 {vr(p,2)}, {vr(p,2)}, {vr(T+2*k,2)}")

def phi8(a, b0, b1, T, VL2E, VEPS):
    P = [b0, b0 + 2, b1, b1 + 2]
    for k, p in enumerate(P): a(f"v_pk_mul_f32 {vr(T+2*k,2)}, {vr(p,2)}, {vr(VL2E,2)}")
    for k in range(8): a(f"v_exp_f32_e64 v{T+k}, v{T+k} clamp")
    for p in P: a(f"v_max_f32 v{p}, 0, v{p}"); a(f"v_max_f32 v{p+1}, 0, v{p+1}")
    for k, p in enumerate(P): a(f"v_pk_add_f32 {vr(p,2)}, {vr(p,2)}, {vr(VEPS,2)}")
    for k, p in enumerate(P): a(f"v_pk_add_f32 {vr(p,2)}, {vr(p,2)}, {vr(T+2*k,2)}")

def atomic_inc(a, srd_d, off, vt, ret=None):
    a(f"v_mov_b32 v{vt}, 1"); a(f"v_mov_b32 v{vt+1}, {off}") if isinstance(off, int) else a(f"v_mov_b32 v{vt+1}, s{off[0]}")
    a("s_mov_b64 exec, 1")
    a(f"buffer_atomic_add v{vt}, v{vt+1}, s[{srd_d}:{srd_d+3}], 0 offen {'sc0 sc1' if ret else 'sc1'}")
    a("s_mov_b64 exec, -1")

def tail_touch(a, ptr, nbytes, wave_off, vl, vtmp, lo=0):
    ninstr = nbytes // 8192
    reps = -(-ninstr // 1024)
    srd(a, S_PF, ptr, lo + nbytes)
    a(f"s_lshl_b32 s{S_T1}, s2, 2\ns_add_u32 s{S_T1}, s{S_T1}, s{S_WAVE}\ns_add_u32 s{S_T1}, s{S_T1}, {(wave_off - 4) & 1023}\ns_and_b32 s{S_T1}, s{S_T1}, 1023")
    a(f"s_lshl_b32 s{S_T1}, s{S_T1}, 13\ns_add_u32 s{S_T1}, s{S_T1}, {lo}")
    a(f"v_lshlrev_b32 v{vtmp}, 7, v{vl}")
    for r in range(reps):
        a(f"buffer_load_dword v{vtmp+1}, v{vtmp}, s[{S_PF}:{S_PF+3}], s{S_T1} offen")
        if r + 1 < reps: a(f"s_add_u32 s{S_T1}, s{S_T1}, {8192*1024}")
    return reps
CSFLAG = ""
MID = (3, 12)
TP = {}
def tails(a, k):
    n = 0
    for (p, lo, nb, off) in TP.get(k, []):
        n += tail_touch(a, globals()[p], nb, off, 1, 56, lo)
    return n
def gen_l1(a, st=False):
    name = "l1_kernel"
    c = Cfg(256, 128, 2, 2, 3, 16)
    c.xflag = FL.get('1x', ''); c.wflag = FL.get('1w', '')
    AUX = c.ring_bytes
    AUX2 = AUX + 2048
    AUXF = AUX2 + 512
    lds = AUXF + 64
    S_DBG = 40; S_GT = 52; S_W1S = 52; S_W3S = 52
    S_TYPE = 56; S_IDX = 57; S_MT = 58; S_JM = 50; S_JN = 51; S_PFL = 59
    kernel_head(a, name)
    a("s_and_b32 s3, s2, 7\ns_lshr_b32 s4, s2, 3")
    a("s_lshr_b32 s5, s3, 2\ns_and_b32 s6, s3, 3")
    a("s_lshr_b32 s7, s4, 3\ns_and_b32 s4, s4, 7")
    a(f"s_lshl_b32 s5, s5, 2\ns_add_u32 s{S_MT}, s5, s7")
    a(f"s_mov_b32 s{S_JM}, s7\ns_mov_b32 s{S_JN}, s4\ns_mov_b32 s{S_PFL}, 128")
    a(f"s_lshl_b32 s{S_ROW0}, s{S_MT}, 8")
    a(f"s_mul_i32 s{S_ROT}, s7, {ROT[1][0]}\ns_mul_i32 s{S_T0}, s4, {ROT[1][1]}\ns_add_u32 s{S_ROT}, s{S_ROT}, s{S_T0}")
    a(f"s_cmp_ge_u32 s{S_ROT}, 16\ns_cselect_b32 s{S_T0}, 16, 0\ns_sub_u32 s{S_ROT}, s{S_ROT}, s{S_T0}")
    a(f"s_mov_b32 s{S_TYPE}, 1\ns_cmp_lt_u32 s4, 2\ns_cmov_b32 s{S_TYPE}, 0\ns_cmp_ge_u32 s4, 6\ns_cmov_b32 s{S_TYPE}, 2")
    a(f"s_mov_b32 s{S_XSTR}, 2048\ns_mov_b32 s{S_KX}, 0\ns_mov_b32 s{S_KW}, 0")
    a("s_waitcnt lgkmcnt(0)")
    srd(a, S_XSRD, P_X, 4 * MB)
    srd(a, S_WS, P_WS, 256 * MB)
    srd(a, S_DBG, P_DBG, 256)
    srd(a, S_WSRD, P_WQKV, 6 * MB)
    LQ, LKV, LH, LJ = [a.label("l1_" + x) for x in ("tq", "tkv", "th", "tj")]
    a(f"s_mov_b32 s{S_WSTR}, 6144\ns_mov_b32 s{S_CA}, 128\ns_mov_b32 s{S_CBB}, 64")
    a(f"s_cmp_eq_u32 s{S_TYPE}, 1\ns_cbranch_scc1 {LKV}")
    a(f"s_cmp_eq_u32 s{S_TYPE}, 2\ns_cbranch_scc1 {LH}")
    a(f"s_lshl_b32 s{S_IDX}, s6, 1\ns_add_u32 s{S_IDX}, s{S_IDX}, s4\ns_lshl_b32 s{S_CB}, s{S_IDX}, 8\ns_branch {LJ}")
    a(f"{LKV}:")
    a(f"s_lshl_b32 s{S_IDX}, s6, 2\ns_add_u32 s{S_IDX}, s{S_IDX}, s4\ns_sub_u32 s{S_IDX}, s{S_IDX}, 2")
    a(f"s_lshl_b32 s{S_CB}, s{S_IDX}, 7\ns_add_u32 s{S_CB}, s{S_CB}, 2048\ns_mov_b32 s{S_CA}, 64\ns_mov_b32 s{S_CBB}, 2048\ns_mov_b32 s{S_PFL}, 2048\ns_branch {LJ}")
    a(f"{LH}:")
    a(f"s_lshl_b32 s{S_IDX}, s6, 1\ns_add_u32 s{S_IDX}, s{S_IDX}, s4\ns_sub_u32 s{S_IDX}, s{S_IDX}, 6\ns_lshl_b32 s{S_CB}, s{S_IDX}, 8")
    a(f"s_mov_b32 s{S_WSTR}, 2048")
    srd(a, S_WSRD, P_W1, 2 * MB)
    a(f"{LJ}:")
    a(f"s_lshl_b32 s{S_WSTEP}, s{S_WSTR}, 6")
    LLD = a.label("l1_loader")
    a(f"s_cmp_ge_u32 s{S_WAVE}, 4\ns_cbranch_scc1 {LLD}")
    R = CRegs(c, 0)
    VTID = R.free; VLN = VTID + 1; VT = VTID + 2
    a(f"v_mov_b32 v{VTID}, v0"); a(f"v_and_b32 v{VLN}, 63, v0")
    if st: a("s_memtime s[90:91]")
    X0, X1_, G0 = 0, 8, 16
    a(f"s_lshl_b32 s{S_T0}, s2, 3\ns_lshl_b32 s{S_T1}, s{S_WAVE}, 1\ns_add_u32 s60, s{S_T0}, s{S_T1}   ; row")
    a(f"s_lshl_b32 s{S_T0}, s60, 11")
    a(f"v_lshlrev_b32 v{VT}, 4, v{VLN}")
    for rr in range(2):
        for hh in range(2):
            a(f"buffer_load_dwordx4 {vr(8*rr+4*hh,4)}, v{VT}, s[{S_XSRD}:{S_XSRD+3}], s{S_T0} offen offset:{rr*2048+hh*1024} nt")
    srd(a, S_GT, P_GATE, 2048)
    for hh in range(2):
        a(f"buffer_load_dwordx4 {vr(G0+4*hh,4)}, v{VT}, s[{S_GT}:{S_GT+3}], 0 offen offset:{hh*1024}")
    LNC0 = a.label("l1_nocs0")
    a(f"s_cmp_lg_u32 s{S_WAVE}, 0\ns_cbranch_scc1 {LNC0}")
    a("s_lshr_b32 s61, s2, 4\ns_and_b32 s63, s2, 15")
    a(f"s_lshl_b32 s62, s61, 12\ns_lshl_b32 s{S_T3}, s63, 8\ns_add_u32 s62, s62, s{S_T3}\ns_add_u32 s62, s62, {WS_CS1}")
    a("s_lshl_b32 s61, s61, 6\ns_lshl_b32 s63, s63, 7")
    srd(a, S_W1S, P_W1, 2 * MB)
    colsum_block(a, S_W1S, 2048, 61, 63, 62, VLN, 128, part=1)
    a(f"{LNC0}:")
    VPF = VT + 10; VPD = VT + 11
    a(f"s_and_b32 s{S_T2}, s{S_WAVE}, 1")
    a(f"s_cmp_lt_u32 s{S_WAVE}, 2")
    for u in range(3): a(f"s_cselect_b32 s{S_PF+u}, s{S_XSRD+u}, s{S_WSRD+u}")
    a(f"s_mov_b32 s{S_PF+3}, 0x20000")
    LPW, LPJ = a.label("l1_pfw"), a.label("l1_pfj")
    a(f"s_cbranch_scc0 {LPW}")
    a(f"s_lshl_b32 s{S_T1}, s{S_JN}, 5\ns_add_u32 s{S_T1}, s{S_T1}, s{S_ROW0}")
    a(f"v_lshrrev_b32 v{VPF}, 1, v{VLN}\nv_add_u32 v{VPF}, s{S_T1}, v{VPF}\nv_lshlrev_b32 v{VPF}, 11, v{VPF}")
    a(f"v_and_b32 v{VPD}, 1, v{VLN}\nv_lshl_add_u32 v{VPF}, v{VPD}, 7, v{VPF}")
    a(f"s_lshl_b32 s{S_PFO}, s{S_T2}, 8\ns_mov_b32 s{S_PFS}, 512\ns_branch {LPJ}")
    a(f"{LPW}:")
    a(f"v_lshrrev_b32 v{VPF}, 1, v{VLN}\nv_lshlrev_b32 v{VPF}, 2, v{VPF}\nv_add_u32 v{VPF}, s{S_JM}, v{VPF}\nv_mul_lo_u32 v{VPF}, v{VPF}, s{S_WSTR}")
    a(f"v_and_b32 v{VPD}, 1, v{VLN}\nv_mul_lo_u32 v{VPD}, v{VPD}, s{S_PFL}\nv_add_u32 v{VPF}, v{VPF}, v{VPD}\nv_add_u32 v{VPF}, s{S_CB}, v{VPF}")
    a(f"s_lshl_b32 s{S_PFS}, s{S_WSTR}, 8\ns_lshl_b32 s{S_PFO}, s{S_WSTR}, 7\ns_mul_i32 s{S_PFO}, s{S_PFO}, s{S_T2}")
    a(f"{LPJ}:")
    n0 = sum(1 for x in PF1 if x == 0)
    for _ in range(n0): pf_touch(a, VPD, VPF, "nt")
    a(f"v_mov_b32 v{VT+1}, {AUXF}\nv_mov_b32 v{VT+2}, 0\nv_mov_b32 v{VT+3}, 0")
    a(f"ds_write_b64 v{VT+1}, {vr(VT+2,2)}")
    emit_compute_setup(a, c, R, VTID, VT + 4)
    F0, F1, FG = 32, 48, 64
    a(f"s_waitcnt vmcnt({n0})")
    for hh in range(2):
        unpack8(a, X0 + 4 * hh, F0 + 8 * hh); unpack8(a, X1_ + 4 * hh, F1 + 8 * hh); unpack8(a, G0 + 4 * hh, FG + 8 * hh)
    S0, S1, D0, D1 = 80, 82, 84, 86
    a(f"v_pk_add_f32 {vr(S0,2)}, {vr(F0,2)}, {vr(F0+2,2)}"); a(f"v_pk_add_f32 {vr(S1,2)}, {vr(F1,2)}, {vr(F1+2,2)}")
    a(f"v_pk_mul_f32 {vr(D0,2)}, {vr(F0,2)}, {vr(FG,2)}"); a(f"v_pk_mul_f32 {vr(D1,2)}, {vr(F1,2)}, {vr(FG,2)}")
    for u in range(2, 16, 2):
        if u >= 4:
            a(f"v_pk_add_f32 {vr(S0,2)}, {vr(S0,2)}, {vr(F0+u,2)}"); a(f"v_pk_add_f32 {vr(S1,2)}, {vr(S1,2)}, {vr(F1+u,2)}")
        a(f"v_pk_fma_f32 {vr(D0,2)}, {vr(F0+u,2)}, {vr(FG+u,2)}, {vr(D0,2)}"); a(f"v_pk_fma_f32 {vr(D1,2)}, {vr(F1+u,2)}, {vr(FG+u,2)}, {vr(D1,2)}")
    for p in (S0, S1, D0, D1): a(f"v_add_f32 v{p}, v{p}, v{p+1}")
    allreduce(a, [S0, S1, D0, D1], [88, 89, 90, 91])
    a(f"v_mul_f32 v{S0}, {f2u(1/1024)}, v{S0}"); a(f"v_mul_f32 v{S1}, {f2u(1/1024)}, v{S1}")
    for u in range(0, 16, 2):
        a(f"v_pk_add_f32 {vr(F0+u,2)}, {vr(F0+u,2)}, {vr(S0,2)} op_sel_hi:[1,0] neg_lo:[0,1] neg_hi:[0,1]")
        a(f"v_pk_add_f32 {vr(F1+u,2)}, {vr(F1+u,2)}, {vr(S1,2)} op_sel_hi:[1,0] neg_lo:[0,1] neg_hi:[0,1]")
    Q0, Q1 = 92, 94
    a(f"v_pk_mul_f32 {vr(Q0,2)}, {vr(F0,2)}, {vr(F0,2)}"); a(f"v_pk_mul_f32 {vr(Q1,2)}, {vr(F1,2)}, {vr(F1,2)}")
    for u in range(2, 16, 2):
        a(f"v_pk_fma_f32 {vr(Q0,2)}, {vr(F0+u,2)}, {vr(F0+u,2)}, {vr(Q0,2)}"); a(f"v_pk_fma_f32 {vr(Q1,2)}, {vr(F1+u,2)}, {vr(F1+u,2)}, {vr(Q1,2)}")
    a(f"v_add_f32 v{Q0}, v{Q0}, v{Q0+1}"); a(f"v_add_f32 v{Q1}, v{Q1}, v{Q1+1}")
    allreduce(a, [Q0, Q1], [88, 89])
    O0, O1 = 96, 100
    a(f"v_mov_b32 v88, {f2u(1e-5)}")
    a(f"v_fmac_f32 v88, {f2u(1/1024)}, v{Q0}"); a(f"v_mov_b32 v89, {f2u(1e-5)}"); a(f"v_fmac_f32 v89, {f2u(1/1024)}, v{Q1}")
    a(f"v_mul_f32 v{D0}, {f2u(-LOG2E)}, v{D0}"); a(f"v_mul_f32 v{D1}, {f2u(-LOG2E)}, v{D1}")
    a(f"v_rsq_f32 v{O0}, v88"); a(f"v_rsq_f32 v{O1}, v89"); a(f"v_exp_f32 v{D0}, v{D0}"); a(f"v_exp_f32 v{D1}, v{D1}")
    a("s_nop 0")
    a(f"v_mul_f32 v{O0+1}, v{S0}, v{O0}"); a(f"v_mul_f32 v{O1+1}, v{S1}, v{O1}")
    a(f"v_add_f32 v{D0}, 1.0, v{D0}"); a(f"v_add_f32 v{D1}, 1.0, v{D1}")
    a(f"v_rcp_f32 v{O0+2}, v{D0}"); a(f"v_rcp_f32 v{O1+2}, v{D1}")
    a(f"v_mov_b32 v{O0+3}, 0"); a(f"v_mov_b32 v{O1+3}, 0")
    a(f"s_lshl_b32 s{S_T0}, s60, 4\ns_add_u32 s{S_T0}, s{S_T0}, {WS_STAT}")
    a(f"v_mov_b32 v{VT}, 0")
    a("s_mov_b64 exec, 1")
    a(f"buffer_store_dwordx4 {vr(O0,4)}, v{VT}, s[{S_WS}:{S_WS+3}], s{S_T0} offen {SC}")
    a(f"buffer_store_dwordx4 {vr(O1,4)}, v{VT}, s[{S_WS}:{S_WS+3}], s{S_T0} offen offset:16 {SC}")
    a("s_mov_b64 exec, -1")
    LNC = a.label("l1_nocs")
    a(f"s_cmp_lg_u32 s{S_WAVE}, 0\ns_cbranch_scc1 {LNC}")
    colsum_block(a, S_W1S, 2048, 61, 63, 62, VLN, 128, part=2)
    a(f"{LNC}:")
    def hk1(): a("s_waitcnt vmcnt(0)")
    def hk2():
        LX = a.label("l1_hk2")
        a(f"s_cmp_lg_u32 s{S_WAVE}, 0\ns_cbranch_scc1 {LX}")
        atomic_inc(a, S_DBG, 128, VT)
        a(f"{LX}:")
    hooks = [(7, hk1), (8, hk2)] + [(x, (lambda: pf_touch(a, VPD, VPF, "nt"))) for x in PF1 if x > 0]
    if MID:
        lo, span = MID
        a(f"s_lshr_b32 s{S_PFS}, s2, 3\ns_mul_i32 s{S_PFS}, s{S_PFS}, {span}\ns_lshr_b32 s{S_PFS}, s{S_PFS}, 5\ns_add_u32 s{S_PFS}, s{S_PFS}, {lo}")
        def mid():
            LE = a.label("l1_mide"); L1_ = a.label("l1_mid1"); L2_ = a.label("l1_mid2")
            a(f"v_lshlrev_b32 v{VPF}, 7, v{VLN}\ns_lshl_b32 s{S_PFO}, s2, 13")
            a(f"s_cmp_eq_u32 s{S_WAVE}, 1\ns_cbranch_scc1 {L1_}\ns_cmp_eq_u32 s{S_WAVE}, 2\ns_cbranch_scc1 {L2_}\ns_cmp_eq_u32 s{S_WAVE}, 3\ns_cbranch_scc1 {LE}")
            for p in (P_W2, P_WO):
                srd(a, S_PF, p, 2 * MB)
                a(f"buffer_load_dword v{VPD}, v{VPF}, s[{S_PF}:{S_PF+3}], s{S_PFO} offen")
            a(f"s_branch {LE}")
            for L_, p in ((L1_, P_W3), (L2_, P_W4)):
                a(f"{L_}:")
                srd(a, S_PF, p, 7 * MB)
                for r in range(4):
                    a(f"buffer_load_dword v{VPD}, v{VPF}, s[{S_PF}:{S_PF+3}], s{S_PFO} offen")
                    a(f"s_add_u32 s{S_PFO}, s{S_PFO}, {2*MB}")
                a(f"s_branch {LE}")
            a(f"{LE}:")
        hooks.append((f"s{S_PFS}", mid))
    for r in range(128): a(f"v_mov_b32 v{r}, 0")
    a("s_waitcnt lgkmcnt(0)")
    LCKV, LCH = a.label("l1_ckv"), a.label("l1_ch")
    a(f"s_cmp_eq_u32 s{S_TYPE}, 1\ns_cbranch_scc1 {LCKV}")
    emit_mainloop(a, c, R, "l1w", wfirst=True, stamp="s_memtime s[92:93]" if st else None, hooks=hooks)
    if st: a("s_memtime s[94:95]")
    VO = VT; CK = R.frag0
    a(f"s_cmp_eq_u32 s{S_TYPE}, 2\ns_cbranch_scc1 {LCH}")
    out_addr(a, c, VO, VLN, VT + 1, S_ROW0, S_CB, 2048)
    a(f"v_mov_b32 v{CK}, {f2u(LOG2E)}\nv_mov_b32 v{CK+1}, {f2u(LOG2E)}\nv_mov_b32 v{CK+2}, {f2u(1e-6)}\nv_mov_b32 v{CK+3}, {f2u(1e-6)}")
    a("s_nop 7")
    n = 0
    for i in range(c.mb):
        for j in range(0, c.nb, 2):
            b0, b1 = R.accb(i, j), R.accb(i, j + 1)
            phi8(a, b0, b1, CK + 8, CK, CK + 2)
            store_pair(a, b0, b1, CK + 16 + 4 * (n & 3), VO, S_WS, WS_PQ + i * 16 * 2048, j * 32); n += 1
    a(f"s_branch L_{name}_fin")
    a(f"{LCH}:")
    out_addr(a, c, VO, VLN, VT + 1, S_ROW0, S_CB, 2048)
    a(f"v_mov_b32 v{CK}, {f2u(GC1)}\nv_mov_b32 v{CK+1}, {f2u(GC1)}\nv_mov_b32 v{CK+2}, {f2u(GC0)}\nv_mov_b32 v{CK+3}, {f2u(GC0)}")
    STt = CK + 32; CS = CK + 48
    a(f"s_lshr_b32 s{S_T0}, s{S_WAVE}, 1\ns_and_b32 s{S_T1}, s{S_WAVE}, 1")
    a(f"s_lshl_b32 s{S_T0}, s{S_T0}, 10\ns_add_u32 s{S_T0}, s{S_T0}, {AUX}")
    a(f"v_and_b32 v{VT+1}, 15, v{VLN}\nv_lshl_add_u32 v{VT+1}, v{VT+1}, 3, s{S_T0}")
    a(f"s_lshl_b32 s{S_T1}, s{S_T1}, 8\ns_add_u32 s{S_T1}, s{S_T1}, {AUX2}")
    a(f"v_lshrrev_b32 v{VT+2}, 4, v{VLN}\nv_lshl_add_u32 v{VT+2}, v{VT+2}, 4, s{S_T1}")
    a("s_barrier")
    for i in range(c.mb): a(f"ds_read_b64 {vr(STt+2*i,2)}, v{VT+1} offset:{i*128}")
    for j in range(c.nb): a(f"ds_read_b128 {vr(CS+4*j,4)}, v{VT+2} offset:{j*64}")
    a("s_waitcnt lgkmcnt(0)")
    n = 0
    for i in range(c.mb):
        for j in range(0, c.nb, 2):
            b0, b1 = R.accb(i, j), R.accb(i, j + 1)
            T8 = CK + 8
            for k, (p, cs) in enumerate(((b0, CS + 4 * j), (b0 + 2, CS + 4 * j + 2), (b1, CS + 4 * j + 4), (b1 + 2, CS + 4 * j + 6))):
                a(f"v_pk_mul_f32 {vr(T8+2*k,2)}, {vr(cs,2)}, {vr(STt+2*i,2)} op_sel:[0,1] op_sel_hi:[1,1]")
            for k, p in enumerate((b0, b0 + 2, b1, b1 + 2)):
                a(f"v_pk_fma_f32 {vr(p,2)}, {vr(p,2)}, {vr(STt+2*i,2)}, {vr(T8+2*k,2)} op_sel_hi:[1,0,1] neg_lo:[0,0,1] neg_hi:[0,0,1]")
            gelu8(a, b0, b1, T8, CK, CK + 2)
            store_pair(a, b0, b1, CK + 16 + 4 * (n & 3), VO, S_WS, WS_H + i * 16 * 2048, j * 32); n += 1
    a(f"s_branch L_{name}_fin")
    a(f"{LCKV}:")
    emit_mainloop(a, c, R, "l1x", wfirst=False, stamp="s_memtime s[92:93]" if st else None, hooks=hooks)
    if st: a("s_memtime s[94:95]")
    a(f"v_mov_b32 v{CK}, {f2u(LOG2E)}\nv_mov_b32 v{CK+1}, {f2u(LOG2E)}\nv_mov_b32 v{CK+2}, {f2u(1e-6)}\nv_mov_b32 v{CK+3}, {f2u(1e-6)}")
    ONES = CK + 4; KV = CK + 16; Z = CK + 32; OP = CK + 40
    for u in range(4): a(f"v_mov_b32 v{ONES+u}, 0x3f803f80")
    for u in range(24): a(f"v_mov_b32 v{KV+u}, 0")
    a("s_nop 7")
    for ip in range(0, c.mb, 2):
        O = OP + 16 * ((ip // 2) & 1)
        for db in range(2):
            phi8(a, R.accb(ip, db), R.accb(ip + 1, db), CK + 8, CK, CK + 2)
        for jb in range(4):
            for hh in range(2):
                b = R.accb(ip + hh, jb)
                a(f"v_cvt_pk_bf16_f32 v{O+4*jb+2*hh}, v{b}, v{b+1}"); a(f"v_cvt_pk_bf16_f32 v{O+4*jb+2*hh+1}, v{b+2}, v{b+3}")
        a("s_nop 1")
        for db in range(2):
            for eb in range(2):
                k = KV + 4 * (db * 2 + eb)
                a(f"{MFMA} {vr(k,4)}, {vr(O+4*db,4)}, {vr(O+8+4*eb,4)}, {vr(k,4)}")
            a(f"{MFMA} {vr(Z+4*db,4)}, {vr(O+4*db,4)}, {vr(ONES,4)}, {vr(Z+4*db,4)}")
    a("s_nop 7\ns_nop 7")
    RED = 2 * c.stage_bytes
    a(f"s_and_b32 s{S_T1}, s{S_WAVE}, 1\ns_mul_i32 s{S_T0}, s{S_T1}, 6144\ns_add_u32 s{S_T0}, s{S_T0}, {RED}")
    a(f"v_lshl_add_u32 v{VT}, v{VLN}, 4, s{S_T0}")
    a(f"s_lshl_b32 s{S_T1}, s{S_T1}, 2\ns_add_u32 s{S_T1}, s{S_T1}, {AUXF}\nv_mov_b32 v{VT+1}, s{S_T1}")
    LW0 = a.label("l1_w0")
    a(f"s_cmp_lt_u32 s{S_WAVE}, 2\ns_cbranch_scc1 {LW0}")
    for u in range(6): a(f"ds_write_b128 v{VT}, {vr(KV+4*u,4)} offset:{u*1024}")
    a(f"v_mov_b32 v{VT+2}, 1")
    a("s_waitcnt lgkmcnt(0)")
    a(f"ds_write_b32 v{VT+1}, v{VT+2}")
    a("s_waitcnt lgkmcnt(0)")
    a(f"s_branch L_{name}_fin")
    a(f"{LW0}:")
    LP = a.label("l1_pollw")
    a(f"{LP}:")
    a(f"ds_read_b32 v{VT+2}, v{VT+1}\ns_waitcnt lgkmcnt(0)\nv_readfirstlane_b32 s{S_T0}, v{VT+2}\ns_cmp_eq_u32 s{S_T0}, 0\ns_cbranch_scc1 {LP}")
    for u in range(6): a(f"ds_read_b128 {vr(4*u,4)}, v{VT} offset:{u*1024}")
    a("s_waitcnt lgkmcnt(0)")
    for u in range(0, 24, 2): a(f"v_pk_add_f32 {vr(KV+u,2)}, {vr(KV+u,2)}, {vr(u,2)}")
    a(f"s_lshl_b32 s60, s{S_IDX}, 1\ns_add_u32 s60, s60, s{S_WAVE}     ; head")
    a(f"s_lshl_b32 s{S_T0}, s60, 3\ns_add_u32 s{S_T0}, s{S_T0}, s{S_MT}\ns_mul_i32 s{S_T0}, s{S_T0}, {KVP_STRIDE}\ns_add_u32 s{S_T0}, s{S_T0}, {WS_KVP}")
    a(f"v_and_b32 v{VT}, 15, v{VLN}\nv_lshlrev_b32 v{VT}, 7, v{VT}\nv_lshrrev_b32 v{VT+1}, 4, v{VLN}\nv_lshl_add_u32 v{VT}, v{VT+1}, 4, v{VT}")
    for db in range(2):
        for eb in range(2):
            a(f"buffer_store_dwordx4 {vr(KV+4*(db*2+eb),4)}, v{VT}, s[{S_WS}:{S_WS+3}], s{S_T0} offen offset:{eb*2048+db*64} {SC}")
    a(f"v_lshlrev_b32 v{VT+1}, 4, v{VT+1}")
    a("s_mov_b32 exec_lo, 0x00010001\ns_mov_b32 exec_hi, 0x00010001")
    a(f"s_add_u32 s{S_T1}, s{S_T0}, 4096")
    for db in range(2):
        a(f"buffer_store_dwordx4 {vr(Z+4*db,4)}, v{VT+1}, s[{S_WS}:{S_WS+3}], s{S_T1} offen offset:{db*64} {SC}")
    a("s_mov_b64 exec, -1")
    a(f"L_{name}_fin:")
    if st:
        a("s_memtime s[96:97]\ns_waitcnt vmcnt(0)\ns_memtime s[98:99]\ns_waitcnt lgkmcnt(0)")
        a(f"s_cmp_lg_u32 s{S_WAVE}, 0\ns_cbranch_scc1 L_{name}_end")
        a("v_mov_b32 v0, s90\nv_mov_b32 v1, s92\nv_mov_b32 v2, s94\nv_mov_b32 v3, s96\nv_mov_b32 v4, s98\nv_mov_b32 v5, s56\nv_mov_b32 v6, 0\nv_mov_b32 v7, 0")
        a(f"s_lshl_b32 s3, s2, 5\ns_add_u32 s3, s3, {64*MB}\nv_mov_b32 v8, s3")
        a(f"buffer_store_dwordx4 v[0:3], v8, s[{S_WS}:{S_WS+3}], 0 offen\nbuffer_store_dwordx4 v[4:7], v8, s[{S_WS}:{S_WS+3}], 0 offen offset:16")
    a("s_endpgm")
    a(f"{LLD}:")
    VL = 1
    def tail1():
        a(f"s_lshl_b32 s60, s2, 2\ns_add_u32 s60, s60, s{S_T0}")
        a(f"s_mul_i32 s61, s60, 1171\ns_lshr_b32 s61, s61, 16     ; /56")
        a("s_mul_i32 s62, s61, 56\ns_sub_u32 s62, s60, s62       ; ns")
        a(f"s_mul_i32 s63, s61, {3584*4}\ns_lshl_b32 s{S_T1}, s62, 8\ns_add_u32 s63, s63, s{S_T1}\ns_add_u32 s63, s63, {WS_CS3}")
        a("s_lshl_b32 s61, s61, 6\ns_lshl_b32 s62, s62, 7")
        srd(a, S_W3S, P_W3, 7 * MB)
        colsum_block(a, S_W3S, 7168, 61, 62, 63, VL, 64, part=1)
        return 8 + tails(a, 1)
    emit_loader(a, c, "l1", tail=tail1)
    VL = 1
    LT = a.label("l1_ltail")
    a(f"s_cmp_lg_u32 s{S_TYPE}, 2\ns_cbranch_scc1 {LT}")
    LP = a.label("l1_pollc")
    a("v_mov_b32 v2, 128")
    a(f"{LP}:")
    a(f"buffer_load_dword v3, v2, s[{S_DBG}:{S_DBG+3}], 0 offen {SC}\ns_waitcnt vmcnt(0)\nv_readfirstlane_b32 s{S_T1}, v3")
    a(f"s_cmp_lt_u32 s{S_T1}, 256\ns_cbranch_scc1 {LP}")
    a(f"s_sub_u32 s{S_T0}, s{S_WAVE}, 4\ns_lshl_b32 s{S_T1}, s{S_T0}, 6\nv_add_u32 v2, s{S_T1}, v{VL}")
    a(f"v_add_u32 v3, s{S_ROW0}, v2\nv_lshlrev_b32 v3, 4, v3")
    a(f"s_mov_b32 s{S_T2}, {WS_STAT}")
    a(f"buffer_load_dwordx2 v[4:5], v3, s[{S_WS}:{S_WS+3}], s{S_T2} offen {SC}")
    a(f"v_lshlrev_b32 v2, 3, v2\nv_add_u32 v2, {AUX}, v2")
    LNC2 = a.label("l1_nocs2")
    a(f"s_cmp_ge_u32 s{S_T0}, 2\ns_cbranch_scc1 {LNC2}")
    a(f"v_add_u32 v6, s{S_T1}, v{VL}\nv_lshlrev_b32 v6, 2, v6")
    a(f"s_lshl_b32 s{S_T2}, s{S_IDX}, 9\ns_add_u32 s{S_T2}, s{S_T2}, {WS_CS1}")
    for ks in range(16):
        a(f"buffer_load_dword v{8+ks}, v6, s[{S_WS}:{S_WS+3}], s{S_T2} offen {SC}")
        a(f"s_add_u32 s{S_T2}, s{S_T2}, 4096")
    a("s_waitcnt vmcnt(0)")
    for w in (8, 4, 2, 1):
        for u in range(w): a(f"v_add_f32 v{8+u}, v{8+u}, v{8+u+w}")
    a(f"v_add_u32 v6, {AUX2}, v6")
    a("ds_write_b32 v6, v8")
    a(f"{LNC2}:")
    a("s_waitcnt vmcnt(0)")
    a("ds_write_b64 v2, v[4:5]")
    a("s_waitcnt lgkmcnt(0)")
    a("s_barrier")
    a(f"{LT}:")
    a(f"s_cmp_ge_u32 s60, 896\ns_cbranch_scc1 L_{name}_end")
    a("s_waitcnt vmcnt(0)")
    colsum_block(a, S_W3S, 7168, 61, 62, 63, VL, 64, part=2)
    a(f"L_{name}_end:\ns_endpgm")
    a(KD.format(name=name, vgpr=256))
    return f"; @launch kernel={name} grid=(256,1,1) block=(512,1,1) lds={lds}"

for b in range(896): assert (b * 1171) >> 16 == b // 56

def build(kernels, st=False):
    a = Asm()
    heads = []
    a('.amdgcn_target "amdgcn-amd-amdhsa--gfx950"\n.text')
    for i, k in enumerate(kernels): heads.append(k(a, st is True or st == i + 1))
    return "\n".join(heads) + "\n" + a.text()

def stamps_out(a, name, s_type):
    a("s_memtime s[96:97]\ns_waitcnt vmcnt(0)\ns_memtime s[98:99]\ns_waitcnt lgkmcnt(0)")
    a(f"s_cmp_lg_u32 s{S_WAVE}, 0\ns_cbranch_scc1 L_{name}_end")
    a(f"v_mov_b32 v0, s90\nv_mov_b32 v1, s92\nv_mov_b32 v2, s94\nv_mov_b32 v3, s96\nv_mov_b32 v4, s98\nv_mov_b32 v5, {s_type}\nv_mov_b32 v6, 0\nv_mov_b32 v7, 0")
    a(f"s_lshl_b32 s3, s2, 5\ns_add_u32 s3, s3, {64*MB}\nv_mov_b32 v8, s3")
    a(f"buffer_store_dwordx4 v[0:3], v8, s[{S_WS}:{S_WS+3}], 0 offen\nbuffer_store_dwordx4 v[4:7], v8, s[{S_WS}:{S_WS+3}], 0 offen offset:16")

def unswap_unpack(a, q, f0, f1):
    a(f"v_permlane16_swap_b32 v{q}, v{q+2}"); a(f"v_permlane16_swap_b32 v{q+1}, v{q+3}")
    a("s_nop 0")
    for (s_, f) in ((q, f0), (q + 1, f0 + 2), (q + 2, f1), (q + 3, f1 + 2)):
        a(f"v_lshlrev_b32 v{f}, 16, v{s_}"); a(f"v_and_b32 v{f+1}, 0xffff0000, v{s_}")

def qreduce(a, regs, tmps):
    for ins in ("v_permlane16_swap_b32", "v_permlane32_swap_b32"):
        for r, t in zip(regs, tmps): a(f"v_mov_b32 v{t}, v{r}")
        if len(regs) < 3: a("s_nop 1")
        for r, t in zip(regs, tmps): a(f"{ins} v{r}, v{t}")
        if len(regs) < 3: a("s_nop 1")
        for r, t in zip(regs, tmps): a(f"v_add_f32 v{r}, v{r}, v{t}")

WS_O = WS_A
WS_FLG = 37*MB
WS_XCH = 40*MB
def gen_l2(a, st=False):
    name = "l2_kernel"
    c = Cfg(128, 64, 4, 1, 6, 16)
    c.xflag = FL.get('2x', ''); c.wflag = FL.get('2w', '')
    c.prebar = True
    lds = c.ring_bytes + 2048 + 64
    S_XIN = 40; S_MT = 57; S_NT = 58
    kernel_head(a, name)
    a("s_and_b32 s3, s2, 7\ns_lshr_b32 s4, s2, 3")
    a("s_lshr_b32 s5, s3, 1\ns_and_b32 s6, s3, 1")
    a("s_lshr_b32 s7, s4, 3\ns_and_b32 s4, s4, 7")
    a(f"s_lshl_b32 s5, s5, 2\ns_add_u32 s{S_MT}, s5, s7")
    a(f"s_lshl_b32 s6, s6, 3\ns_add_u32 s{S_NT}, s6, s4")
    a(f"s_lshl_b32 s{S_ROW0}, s{S_MT}, 7\ns_lshl_b32 s{S_CB}, s{S_NT}, 7")
    a(f"s_mul_i32 s{S_ROT}, s7, {ROT[2][0]}\ns_mul_i32 s{S_T0}, s4, {ROT[2][1]}\ns_add_u32 s{S_ROT}, s{S_ROT}, s{S_T0}\ns_and_b32 s{S_ROT}, s{S_ROT}, 15")
    a(f"s_mov_b32 s{S_XSTR}, 2048")
    a(f"s_mov_b32 s{S_WSTR}, 2048\ns_mov_b32 s{S_CA}, 128\ns_mov_b32 s{S_CBB}, 64\ns_mov_b32 s{S_WSTEP}, {2048*64}")
    a("s_waitcnt lgkmcnt(0)")
    srd(a, S_WS, P_WS, 256 * MB)
    srd(a, S_XIN, P_X, 4 * MB)
    srd(a, S_XSRD, P_WS, 4 * MB, WS_H)
    srd(a, S_WSRD, P_W2, 2 * MB)
    LLD = a.label("l2_ld")
    a(f"s_cmp_ge_u32 s{S_WAVE}, 4\ns_cbranch_scc1 {LLD}")
    R = CRegs(c, 0)
    VTID = R.free; VLN = VTID + 1; VO = VTID + 2; VA = VTID + 3; VB = VTID + 4; VZ = VTID + 5; VK = VTID + 6; VT = VTID + 8
    XR = (VT + 8 + 3) // 4 * 4
    PQ = XR + 16; KVR = PQ + 16; NUM = KVR + 48; PK = NUM + 48
    assert PK + 16 <= 256
    a(f"v_mov_b32 v{VTID}, v0"); a(f"v_and_b32 v{VLN}, 63, v0")
    if st: a("s_memtime s[90:91]")
    AUXK = c.ring_bytes
    a(f"s_and_b32 s62, s2, 31\ns_lshr_b32 s61, s2, 5")
    a(f"s_mul_i32 s60, s62, {8*KVP_STRIDE}\ns_add_u32 s60, s60, {WS_KVP}")
    a(f"v_bfe_u32 v{VA}, v{VLN}, 2, 3\ns_lshl_b32 s{S_T0}, s{S_WAVE}, 3\nv_add_u32 v{VA}, s{S_T0}, v{VA}     ; e")
    a(f"v_and_b32 v{VB}, 3, v{VLN}      ; o")
    a(f"v_lshlrev_b32 v{VZ}, 7, v{VA}\nv_lshl_add_u32 v{VZ}, v{VB}, 5, v{VZ}")
    a(f"v_lshrrev_b32 v{VT}, 5, v{VLN}\nv_mul_u32_u24 v{VT}, {4*KVP_STRIDE}, v{VT}\nv_add_u32 v{VZ}, v{VZ}, v{VT}")
    a(f"s_mov_b32 s{S_T0}, s60")
    for m in range(4):
        for hh in range(2): a(f"buffer_load_dwordx4 {vr(KVR+8*m+4*hh,4)}, v{VZ}, s[{S_WS}:{S_WS+3}], s{S_T0} offen offset:{hh*16}")
        a(f"s_add_u32 s{S_T0}, s{S_T0}, {KVP_STRIDE}")
    a(f"v_bfe_u32 v{VT}, v{VLN}, 2, 3\nv_mul_u32_u24 v{VT}, {KVP_STRIDE}, v{VT}\nv_lshl_add_u32 v{VT}, v{VB}, 5, v{VT}\nv_add_u32 v{VT}, 4096, v{VT}")
    for hh in range(2): a(f"buffer_load_dwordx4 {vr(KVR+32+4*hh,4)}, v{VT}, s[{S_WS}:{S_WS+3}], s60 offen offset:{hh*16}")
    a(f"v_lshrrev_b32 v{VT}, 4, v{VA}\nv_lshlrev_b32 v{VT}, 10, v{VT}\nv_and_b32 v{VA}, 15, v{VA}\nv_lshl_add_u32 v{VA}, v{VB}, 4, v{VA}\nv_lshl_add_u32 v{VK}, v{VA}, 4, v{VT}\nv_add_u32 v{VK}, {AUXK}, v{VK}")
    a(f"v_lshlrev_b32 v{VK+1}, 4, v{VB}\nv_add_u32 v{VK+1}, {AUXK+2048}, v{VK+1}")
    a(f"s_lshl_b32 s{S_T0}, s61, 19\ns_lshl_b32 s{S_T1}, s{S_WAVE}, 17\ns_add_u32 s63, s{S_T0}, s{S_T1}\ns_lshl_b32 s{S_T1}, s62, 6\ns_add_u32 s63, s63, s{S_T1}")
    a(f"v_and_b32 v{VA}, 15, v{VLN}\nv_lshlrev_b32 v{VA}, 11, v{VA}\nv_and_b32 v{VZ}, 48, v{VLN}\nv_add_u32 v{VA}, v{VA}, v{VZ}")
    a(f"s_add_u32 s{S_T0}, s63, {WS_PQ}")
    for b in range(4):
        a(f"buffer_load_dwordx4 {vr(PQ+4*b,4)}, v{VA}, s[{S_WS}:{S_WS+3}], s{S_T0} offen")
        a(f"s_add_u32 s{S_T0}, s{S_T0}, 32768")
    out_addr(a, c, VO, VLN, VT, S_ROW0, S_CB, 2048)
    n = 0
    for i in range(c.mb):
        for j in range(0, c.nb, 2):
            a(f"s_mov_b32 s{S_T3}, {i*16*2048}")
            a(f"buffer_load_dwordx4 {vr(XR+4*n,4)}, v{VO}, s[{S_XIN}:{S_XIN+3}], s{S_T3} offen offset:{j*32} nt"); n += 1
    emit_compute_setup(a, c, R, VTID, VT)
    for r in range(c.mb * c.nb * 4): a(f"v_mov_b32 v{r}, 0")
    a(f"v_and_b32 v{VB}, 15, v{VLN}\nv_lshlrev_b32 v{VB}, 11, v{VB}")
    a(f"v_bfe_u32 v{VT}, v{VLN}, 5, 1\nv_lshl_add_u32 v{VB}, v{VT}, 4, v{VB}\nv_bfe_u32 v{VT}, v{VLN}, 4, 1\nv_lshl_add_u32 v{VB}, v{VT}, 5, v{VB}")
    a(f"v_add_u32 v{VB}, s63, v{VB}")
    a("s_waitcnt vmcnt(8)")
    for m in range(1, 4):
        for u in range(0, 8, 2): a(f"v_pk_add_f32 {vr(KVR+u,2)}, {vr(KVR+u,2)}, {vr(KVR+8*m+u,2)}")
    ZR = KVR + 32; TM = KVR + 8
    for mod in ("row_ror:4", "row_ror:8"):
        for u in range(8): a(f"v_add_f32_dpp v{ZR+u}, v{ZR+u}, v{ZR+u} {mod} row_mask:0xf bank_mask:0xf")
    for u in range(8): a(f"v_mov_b32 v{TM+u}, v{ZR+u}")
    for u in range(8): a(f"v_mov_b32 v{TM+8+u}, v{KVR+u}")
    for u in range(8): a(f"v_permlane16_swap_b32 v{ZR+u}, v{TM+u}")
    for u in range(8): a(f"v_permlane32_swap_b32 v{KVR+u}, v{TM+8+u}")
    for u in range(8): a(f"v_add_f32 v{ZR+u}, v{ZR+u}, v{TM+u}")
    for u in range(8): a(f"v_add_f32 v{KVR+u}, v{KVR+u}, v{TM+8+u}")
    for u in range(4): a(f"v_cvt_pk_bf16_f32 v{PK+u}, v{KVR+2*u}, v{KVR+2*u+1}")
    for u in range(4): a(f"v_cvt_pk_bf16_f32 v{PK+4+u}, v{ZR+2*u}, v{ZR+2*u+1}")
    a(f"ds_write_b128 v{VK}, {vr(PK,4)}")
    a(f"ds_write_b128 v{VK+1}, {vr(PK+4,4)}")
    a(f"v_lshlrev_b32 v{VK}, 4, v{VLN}\nv_add_u32 v{VK}, {AUXK}, v{VK}\nv_add_u32 v{VK+1}, {AUXK+2048}, v{VZ}")
    a("s_waitcnt lgkmcnt(0)\ns_barrier")
    a(f"ds_read_b128 {vr(KVR+8,4)}, v{VK+1}\nds_read_b128 {vr(KVR,4)}, v{VK}\nds_read_b128 {vr(KVR+4,4)}, v{VK} offset:1024")
    a("s_waitcnt vmcnt(4) lgkmcnt(0)")
    for h in range(4):
        for u in (2, 0, 1):
            a(f"{MFMA} {vr(NUM+12*h+4*u,4)}, {vr(KVR+4*u,4)}, {vr(PQ+4*h,4)}, 0")
    a("s_nop 7")
    for h in range(4): a(f"v_add_f32 v{NUM+12*h+8}, {f2u(1e-6)}, v{NUM+12*h+8}")
    for h in range(4): a(f"v_rcp_f32 v{NUM+12*h+8}, v{NUM+12*h+8}")
    for h in range(4):
        for k in range(0, 8, 2): a(f"v_pk_mul_f32 {vr(NUM+12*h+k,2)}, {vr(NUM+12*h+k,2)}, {vr(NUM+12*h+8,2)} op_sel_hi:[1,0]")
    for h in range(4):
        store_pair(a, NUM + 12 * h, NUM + 12 * h + 4, PK + 4 * h, VB, S_WS, WS_O + h * 32768, 0)
    emit_mainloop(a, c, R, "l2g4", wfirst=True, stamp="s_memtime s[92:93]" if st else None)
    if st: a("s_memtime s[94:95]")
    CK = R.frag0
    a("s_waitcnt vmcnt(0)")
    a("s_nop 4")
    n = 0
    SUM = CK + 32; M2 = CK + 36; TMP = CK + 40
    for i in range(c.mb):
        for j in range(0, c.nb, 2):
            b0, b1 = R.accb(i, j), R.accb(i, j + 1)
            unswap_unpack(a, XR + 4 * n, CK, CK + 4)
            for k, p in enumerate((b0, b0 + 2, b1, b1 + 2)): a(f"v_pk_add_f32 {vr(p,2)}, {vr(p,2)}, {vr(CK+2*k,2)}")
            store_pair(a, b0, b1, CK + 16 + 4 * (n & 3), VO, S_WS, WS_X1 + i * 16 * 2048, j * 32); n += 1
        b = R.accb(i, 0)
        a(f"v_pk_add_f32 {vr(CK+8,2)}, {vr(b,2)}, {vr(b+2,2)}")
        for u in range(4, 16, 2): a(f"v_pk_add_f32 {vr(CK+8,2)}, {vr(CK+8,2)}, {vr(b+u,2)}")
        a(f"v_add_f32 v{SUM+i}, v{CK+8}, v{CK+9}")
    qreduce(a, [SUM + i for i in range(c.mb)], [TMP + i for i in range(c.mb)])
    for i in range(c.mb):
        b = R.accb(i, 0)
        a(f"v_mul_f32 v{CK+8}, {f2u(1/64)}, v{SUM+i}")
        for u in range(0, 16, 2): a(f"v_pk_add_f32 {vr(b+u,2)}, {vr(b+u,2)}, {vr(CK+8,2)} op_sel_hi:[1,0] neg_lo:[0,1] neg_hi:[0,1]")
        a(f"v_pk_mul_f32 {vr(CK+10,2)}, {vr(b,2)}, {vr(b,2)}")
        for u in range(2, 16, 2): a(f"v_pk_fma_f32 {vr(CK+10,2)}, {vr(b+u,2)}, {vr(b+u,2)}, {vr(CK+10,2)}")
        a(f"v_add_f32 v{M2+i}, v{CK+10}, v{CK+11}")
    qreduce(a, [M2 + i for i in range(c.mb)], [TMP + i for i in range(c.mb)])
    a(f"s_lshl_b32 s{S_T0}, s{S_WAVE}, 5\ns_add_u32 s{S_T0}, s{S_T0}, s{S_ROW0}\ns_lshl_b32 s{S_T0}, s{S_T0}, 3")
    a(f"s_lshl_b32 s{S_T1}, s{S_NT}, 14")
    a(f"s_add_u32 s{S_T0}, s{S_T0}, s{S_T1}\ns_add_u32 s{S_T0}, s{S_T0}, {WS_ST1}")
    a(f"v_lshlrev_b32 v{VT}, 3, v{VLN}")
    for i in range(c.mb): a(f"v_mov_b32 v{CK+2*i}, v{SUM+i}"); a(f"v_mov_b32 v{CK+2*i+1}, v{M2+i}")
    a("s_mov_b64 exec, 0xffff")
    for i in range(c.mb):
        a(f"buffer_store_dwordx2 {vr(CK+2*i,2)}, v{VT}, s[{S_WS}:{S_WS+3}], s{S_T0} offen offset:{i*128} {SC}")
    a("s_mov_b64 exec, -1")
    if st: stamps_out(a, name, 0)
    a("s_endpgm")
    a(f"{LLD}:")
    emit_loader(a, c, "l2g4", xshift=[-1, 1, -2, 2], tail=lambda: tails(a, 2))
    a(f"s_cmp_lg_u32 s{S_WAVE}, 4\ns_cbranch_scc1 L_{name}_end")
    a(f"v_lshlrev_b32 v2, 2, v1\nv_mov_b32 v3, 0\ns_lshl_b32 s{S_T0}, s2, 8\ns_add_u32 s{S_T0}, s{S_T0}, {WS_FLG}")
    a(f"buffer_store_dword v3, v2, s[{S_WS}:{S_WS+3}], s{S_T0} offen {SC}")
    a(f"L_{name}_end:\ns_endpgm")
    a(KD.format(name=name, vgpr=256))
    return f"; @launch kernel={name} grid=(256,1,1) block=(512,1,1) lds={lds}"

def gen_l3(a, st=False):
    name = "l3_kernel"
    c = Cfg(128, 224, 2, 2, 3, 16)
    c.jmap = [(j * 32, 192) for j in range(6)] + [(384, 32)]
    c.xflag = FL.get('3x', ''); c.wflag = FL.get('3w', '')
    AUX = c.ring_bytes; AUX2 = AUX + 1024
    lds = AUX2 + 1024
    S_MT = 57; S_NT = 58
    kernel_head(a, name)
    a("s_and_b32 s3, s2, 7\ns_lshr_b32 s4, s2, 3")
    a("s_lshr_b32 s5, s3, 2\ns_and_b32 s6, s3, 3")
    a("s_lshr_b32 s7, s4, 2\ns_and_b32 s4, s4, 3")
    a(f"s_lshl_b32 s5, s5, 3\ns_add_u32 s{S_MT}, s5, s7")
    a(f"s_lshl_b32 s6, s6, 2\ns_add_u32 s{S_NT}, s6, s4")
    a(f"s_lshl_b32 s{S_ROW0}, s{S_MT}, 7\ns_mul_i32 s{S_CB}, s{S_NT}, 448")
    a(f"s_mul_i32 s{S_ROT}, s7, {ROT[3][0]}\ns_mul_i32 s{S_T0}, s4, {ROT[3][1]}\ns_add_u32 s{S_ROT}, s{S_ROT}, s{S_T0}")
    a(f"s_cmp_ge_u32 s{S_ROT}, 16\ns_cselect_b32 s{S_T0}, 16, 0\ns_sub_u32 s{S_ROT}, s{S_ROT}, s{S_T0}")
    a(f"s_mov_b32 s{S_XSTR}, 2048\ns_mov_b32 s{S_KX}, 0\ns_mov_b32 s{S_KW}, 0")
    a(f"s_mov_b32 s{S_WSTR}, 7168\ns_mov_b32 s{S_CA}, 128\ns_mov_b32 s{S_CBB}, 64\ns_mov_b32 s{S_WSTEP}, {7168*64}")
    a("s_waitcnt lgkmcnt(0)")
    srd(a, S_WS, P_WS, 256 * MB)
    srd(a, S_XSRD, P_WS, 4 * MB, WS_X1)
    srd(a, S_WSRD, P_W3, 7 * MB)
    LLD = a.label("l3_ld")
    a(f"s_cmp_ge_u32 s{S_WAVE}, 4\ns_cbranch_scc1 {LLD}")
    R = CRegs(c, 0)
    VTID = R.free; VLN = VTID + 1; VO = VTID + 2; VO2 = VTID + 3; VT = VTID + 4
    a(f"v_mov_b32 v{VTID}, v0"); a(f"v_and_b32 v{VLN}, 63, v0")
    if st: a("s_memtime s[90:91]")
    emit_compute_setup(a, c, R, VTID, VT)
    for r in range(c.mb * c.nb * 4): a(f"v_mov_b32 v{r}, 0")
    emit_mainloop(a, c, R, "l3", wfirst=True, stamp="s_memtime s[92:93]" if st else None)
    if st: a("s_memtime s[94:95]")
    CK = R.frag0
    out_addr(a, c, VO, VLN, VT, S_ROW0, S_CB, 7168, wnb=192)
    a(f"s_and_b32 s{S_T1}, s{S_WAVE}, 1\ns_lshl_b32 s{S_T1}, s{S_T1}, 5\ns_add_u32 s{S_T1}, s{S_T1}, s{S_CB}")
    a(f"v_and_b32 v{VO2}, 15, v{VLN}\nv_add_u32 v{VO2}, s{S_T0}, v{VO2}\nv_mul_u32_u24 v{VO2}, 7168, v{VO2}\nv_add_u32 v{VO2}, s{S_T1}, v{VO2}")
    a(f"v_lshrrev_b32 v{VT}, 4, v{VLN}\nv_lshl_add_u32 v{VO2}, v{VT}, 3, v{VO2}")
    a(f"v_mov_b32 v{CK}, {f2u(GC1)}\nv_mov_b32 v{CK+1}, {f2u(GC1)}\nv_mov_b32 v{CK+2}, {f2u(GC0)}\nv_mov_b32 v{CK+3}, {f2u(GC0)}")
    STt = CK + 32; CS = CK + 40
    a(f"s_lshr_b32 s{S_T0}, s{S_WAVE}, 1\ns_and_b32 s{S_T1}, s{S_WAVE}, 1")
    a(f"s_lshl_b32 s{S_T0}, s{S_T0}, 9\ns_add_u32 s{S_T0}, s{S_T0}, {AUX}")
    a(f"v_and_b32 v{VT+1}, 15, v{VLN}\nv_lshl_add_u32 v{VT+1}, v{VT+1}, 3, s{S_T0}")
    a(f"s_lshl_b32 s{S_T2}, s{S_T1}, 6\ns_add_u32 s{S_T2}, s{S_T2}, {AUX2+768}")
    a(f"s_mul_i32 s{S_T1}, s{S_T1}, 384\ns_add_u32 s{S_T1}, s{S_T1}, {AUX2}")
    a(f"v_lshrrev_b32 v{VT+3}, 4, v{VLN}\nv_lshl_add_u32 v{VT+2}, v{VT+3}, 4, s{S_T1}\nv_lshl_add_u32 v{VT+3}, v{VT+3}, 4, s{S_T2}")
    a("s_barrier")
    for i in range(c.mb): a(f"ds_read_b64 {vr(STt+2*i,2)}, v{VT+1} offset:{i*128}")
    for j in range(6): a(f"ds_read_b128 {vr(CS+4*j,4)}, v{VT+2} offset:{j*64}")
    a(f"ds_read_b128 {vr(CS+24,4)}, v{VT+3}")
    a("s_waitcnt lgkmcnt(0)")
    T8 = CK + 8
    def lnfold(i, blocks):
        k = 0
        for (b, j) in blocks:
            for u in (0, 2):
                a(f"v_pk_mul_f32 {vr(T8+2*k,2)}, {vr(CS+4*j+u,2)}, {vr(STt+2*i,2)} op_sel:[0,1] op_sel_hi:[1,1]"); k += 1
        k = 0
        for (b, j) in blocks:
            for u in (0, 2):
                a(f"v_pk_fma_f32 {vr(b+u,2)}, {vr(b+u,2)}, {vr(STt+2*i,2)}, {vr(T8+2*k,2)} op_sel_hi:[1,0,1] neg_lo:[0,0,1] neg_hi:[0,0,1]"); k += 1
    n = 0
    for i in range(c.mb):
        for j in range(0, 6, 2):
            b0, b1 = R.accb(i, j), R.accb(i, j + 1)
            lnfold(i, [(b0, j), (b1, j + 1)])
            gelu8(a, b0, b1, T8, CK, CK + 2)
            store_pair(a, b0, b1, CK + 16 + 4 * (n & 3), VO, S_WS, WS_H2 + i * 16 * 7168, j * 32); n += 1
    for i in range(0, c.mb, 2):
        b0, b1 = R.accb(i, 6), R.accb(i + 1, 6)
        lnfold(i, [(b0, 6)]); lnfold(i + 1, [(b1, 6)])
        gelu8(a, b0, b1, T8, CK, CK + 2)
        for k, b in enumerate((b0, b1)):
            q = CK + 16 + 4 * (n & 3); n += 1
            a(f"v_cvt_pk_bf16_f32 v{q}, v{b}, v{b+1}"); a(f"v_cvt_pk_bf16_f32 v{q+1}, v{b+2}, v{b+3}")
            a(f"s_mov_b32 s{S_T3}, {WS_H2 + (i+k)*16*7168}")
            a(f"buffer_store_dwordx2 {vr(q,2)}, v{VO2}, s[{S_WS}:{S_WS+3}], s{S_T3} offen offset:384")
    if st: stamps_out(a, name, 0)
    a("s_endpgm")
    a(f"{LLD}:")
    VL = 1
    B = 64
    def first():
        a(f"s_mul_i32 s{S_T1}, s{S_T0}, 224\nv_lshl_add_u32 v{B}, v{VL}, 2, s{S_T1}")
        a(f"s_mul_i32 s{S_T2}, s{S_NT}, 896\ns_add_u32 s{S_T2}, s{S_T2}, {WS_CS3}")
        for ks in range(16):
            a(f"buffer_load_dword v{B+8+ks}, v{B}, s[{S_WS}:{S_WS+3}], s{S_T2} offen")
            a(f"s_add_u32 s{S_T2}, s{S_T2}, {3584*4}")
        a(f"s_and_b32 s{S_T1}, s{S_T0}, 1\ns_lshl_b32 s{S_T1}, s{S_T1}, 6\nv_add_u32 v{B+2}, s{S_T1}, v{VL}\nv_add_u32 v{B+3}, s{S_ROW0}, v{B+2}\nv_lshlrev_b32 v{B+3}, 3, v{B+3}")
        for g in range(16):
            a(f"s_mov_b32 s{S_T2}, {WS_ST1 + g*16384}")
            a(f"buffer_load_dwordx2 {vr(B+32+2*g,2)}, v{B+3}, s[{S_WS}:{S_WS+3}], s{S_T2} offen")
        return 32
    emit_loader(a, c, "l3", first=first, tail=lambda: tails(a, 3))
    a(f"v_mov_b32 v{B+4}, v{B+32}\nv_mov_b32 v{B+5}, v{B+33}")
    for g in range(1, 16): a(f"v_pk_add_f32 {vr(B+4,2)}, {vr(B+4,2)}, {vr(B+32+2*g,2)}")
    a(f"v_mul_f32 v{B+4}, {f2u(1/1024)}, v{B+4}      ; mean")
    for g in range(16):
        a(f"v_mul_f32 v{B+7}, {f2u(1/64)}, v{B+32+2*g}")
        a(f"v_sub_f32 v{B+7}, v{B+7}, v{B+4}"); a(f"v_mul_f32 v{B+7}, v{B+7}, v{B+7}"); a(f"v_fmac_f32 v{B+5}, {f2u(64.0)}, v{B+7}")
    a(f"v_mov_b32 v{B+7}, {f2u(1e-5)}\nv_fmac_f32 v{B+7}, {f2u(1/1024)}, v{B+5}\nv_rsq_f32 v{B+5}, v{B+7}\ns_nop 0")
    a(f"v_mul_f32 v{B+7}, v{B+4}, v{B+5}\nv_mov_b32 v{B+4}, v{B+5}\nv_mov_b32 v{B+5}, v{B+7}")
    a(f"v_lshlrev_b32 v{B+2}, 3, v{B+2}\nv_add_u32 v{B+2}, {AUX}, v{B+2}\nds_write_b64 v{B+2}, {vr(B+4,2)}")
    for w in (8, 4, 2, 1):
        for u in range(w): a(f"v_add_f32 v{B+8+u}, v{B+8+u}, v{B+8+u+w}")
    a(f"v_add_u32 v{B}, {AUX2}, v{B}")
    a("s_mov_b32 exec_hi, 0x00ffffff")
    a(f"ds_write_b32 v{B}, v{B+8}")
    a("s_mov_b64 exec, -1")
    a("s_waitcnt lgkmcnt(0)")
    a("s_barrier")
    a(f"L_{name}_end:\ns_endpgm")
    a(KD.format(name=name, vgpr=256))
    return f"; @launch kernel={name} grid=(256,1,1) block=(512,1,1) lds={lds}"

def pf_select(a, srd_a, srd_b, step_a, step_b):
    a(f"s_cmp_lt_u32 s{S_WAVE}, 2")
    for u in range(3): a(f"s_cselect_b32 s{S_PF+u}, s{srd_a+u}, s{srd_b+u}")
    a(f"s_mov_b32 s{S_PF+3}, 0x20000")
    a(f"s_mov_b32 s{S_PFS}, {step_b}"); a(f"s_cmov_b32 s{S_PFS}, {step_a}")
    a(f"s_mov_b32 s{S_PFO}, 0")

def gen_l4(a, st=False):
    name = "l4_kernel"
    c = Cfg(128, 128, 2, 2, 4, 36)
    c.xflag = FL.get('4x', ''); c.wflag = FL.get('4w', '')
    lds = c.ring_bytes
    S_OUT = 40; S_X2 = 52; S_W2 = 60; S_MT = 57; S_NT = 58; S_TYPE = 56; S_SW = 59
    kernel_head(a, name)
    a(f"s_and_b32 s{S_TYPE}, s2, 1\ns_bfe_u32 s5, s2, 0x10002\ns_bfe_u32 s6, s2, 0x10001\ns_lshr_b32 s4, s2, 3")
    a("s_lshr_b32 s7, s4, 2\ns_and_b32 s4, s4, 3")
    a(f"s_lshl_b32 s5, s5, 3\ns_add_u32 s{S_MT}, s5, s7")
    a(f"s_lshl_b32 s6, s6, 2\ns_add_u32 s{S_NT}, s6, s4")
    a(f"s_lshl_b32 s{S_ROW0}, s{S_MT}, 7\ns_lshl_b32 s{S_CB}, s{S_NT}, 8")
    a(f"s_mul_i32 s{S_ROT}, s7, {ROT[4][0]}\ns_mul_i32 s{S_T0}, s4, {ROT[4][1]}\ns_add_u32 s{S_ROT}, s{S_ROT}, s{S_T0}")
    a(f"s_mov_b32 s{S_WSTR}, 2048\ns_mov_b32 s{S_CA}, 128\ns_mov_b32 s{S_CBB}, 64\ns_mov_b32 s{S_WSTEP}, {2048*64}")
    a("s_waitcnt lgkmcnt(0)")
    srd(a, S_WS, P_WS, 256 * MB)
    srd(a, S_X2, P_WS, 2048 * 7168, WS_H2)
    srd(a, S_W2, P_W4, 7 * MB)
    srd(a, S_OUT, P_OUT, 4 * MB)
    srd(a, S_XSRD, P_WS, 4 * MB, WS_O)
    srd(a, S_WSRD, P_WO, 2 * MB)
    a(f"s_mov_b32 s{S_XSTR}, 2048\ns_mov_b32 s{S_KX}, 0\ns_mov_b32 s{S_KW}, 0\ns_mov_b32 s{S_SW}, 16")
    LA = a.label("l4_ta")
    a(f"s_cmp_eq_u32 s{S_TYPE}, 0\ns_cbranch_scc1 {LA}")
    for u in range(3): a(f"s_mov_b32 s{S_XSRD+u}, s{S_X2+u}"); a(f"s_mov_b32 s{S_WSRD+u}, s{S_W2+u}")
    a(f"s_mov_b32 s{S_XSTR}, 7168\ns_mov_b32 s{S_KX}, 2560\ns_mov_b32 s{S_KW}, {1280*2048}\ns_mov_b32 s{S_SW}, 1000")
    a(f"{LA}:")
    LLD = a.label("l4_ld")
    a(f"s_cmp_ge_u32 s{S_WAVE}, 4\ns_cbranch_scc1 {LLD}")
    R = CRegs(c, 0)
    VTID = R.free; VLN = VTID + 1; VO = VTID + 2; VE = VTID + 3; VT = VTID + 4
    AS = (VT + 8 + 3) // 4 * 4; XR = AS + 32; GR = XR + 16; RC = GR + 8
    assert RC + 32 <= 256
    a(f"v_mov_b32 v{VTID}, v0"); a(f"v_and_b32 v{VLN}, 63, v0")
    if st: a("s_memtime s[90:91]")
    out_addr(a, c, VO, VLN, VT, S_ROW0, S_CB, 2048)
    a(f"v_and_b32 v{VT}, 15, v{VLN}\nv_add_u32 v{VT}, s{S_T0}, v{VT}\nv_lshlrev_b32 v{VT}, 4, v{VT}")
    a(f"s_mov_b32 s{S_T3}, {WS_STAT}")
    for i in range(c.mb): a(f"buffer_load_dword v{GR+2*i}, v{VT}, s[{S_WS}:{S_WS+3}], s{S_T3} offen offset:{8+i*256}")
    a(f"s_lshl_b32 s{S_T0}, s{S_TYPE}, 16\nv_add_u32 v{VO}, s{S_T0}, v{VO}")
    n = 0
    for ii in range(2):
        for j in range(0, c.nb, 2):
            a(f"s_mov_b32 s{S_T3}, {WS_X1 + ii*16*2048}")
            a(f"buffer_load_dwordx4 {vr(XR+4*n,4)}, v{VO}, s[{S_WS}:{S_WS+3}], s{S_T3} offen offset:{j*32}"); n += 1
    emit_compute_setup(a, c, R, VTID, VT)
    for r in range(64): a(f"v_mov_b32 v{r}, 0")
    for r in range(32): a(f"v_mov_b32 v{AS+r}, 0")
    def stash():
        LX = a.label("l4_nst")
        a(f"s_cmp_lg_u32 s{S_TYPE}, 0\ns_cbranch_scc1 {LX}")
        a("s_nop 7")
        for r in range(32): a(f"v_cvt_pk_bf16_f32 v{AS+r}, v{2*r}, v{2*r+1}")
        for r in range(64): a(f"v_mov_b32 v{r}, 0")
        a("s_nop 1")
        a(f"{LX}:")
    emit_mainloop(a, c, R, "l4", wfirst=True, stamp="s_memtime s[92:93]" if st else None, hooks=[(17, stash)])
    if st: a("s_memtime s[94:95]")
    CK = R.frag0
    a("s_waitcnt vmcnt(0)\ns_nop 4")
    for i in range(c.mb): a(f"v_sub_f32 v{GR+2*i+1}, 1.0, v{GR+2*i}")
    a(f"v_lshlrev_b32 v{VE}, 4, v{VLN}")
    a(f"s_lshl_b32 s{S_T0}, s2, 2\ns_add_u32 s{S_T0}, s{S_T0}, s{S_WAVE}")
    a(f"s_lshl_b32 s62, s{S_T0}, 13\ns_add_u32 s62, s62, {WS_XCH}")
    a(f"s_lshl_b32 s63, s{S_T0}, 6\ns_add_u32 s63, s63, {WS_FLG}")
    a(f"s_xor_b32 s{S_T0}, s{S_T0}, 4")
    a(f"s_lshl_b32 s60, s{S_T0}, 13\ns_add_u32 s60, s60, {WS_XCH}")
    a(f"s_lshl_b32 s61, s{S_T0}, 6\ns_add_u32 s61, s61, {WS_FLG}")
    def uterm(i):
        for j in range(c.nb):
            b = R.accb(i, j); sa = AS + b // 2
            a(f"v_lshlrev_b32 v{CK}, 16, v{sa}\nv_and_b32 v{CK+1}, 0xffff0000, v{sa}\nv_lshlrev_b32 v{CK+2}, 16, v{sa+1}\nv_and_b32 v{CK+3}, 0xffff0000, v{sa+1}")
            for u in (0, 2):
                a(f"v_pk_mul_f32 {vr(CK+u,2)}, {vr(CK+u,2)}, {vr(GR+2*i,2)} op_sel_hi:[1,0]")
            for u in (0, 2):
                a(f"v_pk_fma_f32 {vr(b+u,2)}, {vr(b+u,2)}, {vr(GR+2*i,2)}, {vr(CK+u,2)} op_sel:[0,1,0] op_sel_hi:[1,1,1]")
    LB = a.label("l4_eb"); LF = a.label("l4_ef")
    a(f"s_cmp_eq_u32 s{S_TYPE}, 1\ns_cbranch_scc1 {LB}")
    for ty in range(2):
        keep = [0, 1] if ty == 0 else [2, 3]; send = [2, 3] if ty == 0 else [0, 1]
        if ty == 1: a(f"{LB}:")
        n = 0
        for i in send:
            uterm(i)
            for j in range(c.nb):
                a(f"buffer_store_dwordx4 {vr(R.accb(i,j),4)}, v{VE}, s[{S_WS}:{S_WS+3}], s62 offen offset:{(n&3)*1024} {SC}"); n += 1
                if n == 4: a("s_add_u32 s62, s62, 4096")
        n = 0
        for ii, i in enumerate(keep):
            uterm(i)
            for j in range(0, c.nb, 2):
                b0, b1 = R.accb(i, j), R.accb(i, j + 1)
                unswap_unpack(a, XR + 4 * n, CK, CK + 4); n += 1
                for k, p in enumerate((b0, b0 + 2, b1, b1 + 2)):
                    a(f"v_pk_fma_f32 {vr(p,2)}, {vr(CK+2*k,2)}, {vr(GR+2*i,2)}, {vr(p,2)} op_sel:[0,1,0] op_sel_hi:[1,1,1]")
        a("s_waitcnt vmcnt(0)")
        a(f"v_mov_b32 v{VT}, 1\nv_mov_b32 v{VT+1}, 0")
        a("s_mov_b64 exec, 1")
        a(f"buffer_store_dword v{VT}, v{VT+1}, s[{S_WS}:{S_WS+3}], s63 offen {SC}")
        LP = a.label("l4_poll")
        a(f"{LP}:")
        a(f"buffer_load_dword v{VT+2}, v{VT+1}, s[{S_WS}:{S_WS+3}], s61 offen {SC}")
        a(f"s_waitcnt vmcnt(0)\nv_readfirstlane_b32 s{S_T0}, v{VT+2}\ns_cmp_eq_u32 s{S_T0}, 0\ns_cbranch_scc1 {LP}")
        a("s_mov_b64 exec, -1")
        for n in range(8):
            a(f"buffer_load_dwordx4 {vr(RC+4*n,4)}, v{VE}, s[{S_WS}:{S_WS+3}], s60 offen offset:{(n&3)*1024} {SC}")
            if n == 3: a("s_add_u32 s60, s60, 4096")
        n = 0
        for ii, i in enumerate(keep):
            for j in range(0, c.nb, 2):
                b0, b1 = R.accb(i, j), R.accb(i, j + 1)
                a(f"s_waitcnt vmcnt({6-2*n+n})" if False else f"s_waitcnt vmcnt({(6-2*n)+n})")
                r0 = RC + 4 * (ii * 4 + j)
                for k, p in enumerate((b0, b0 + 2, b1, b1 + 2)): a(f"v_pk_add_f32 {vr(p,2)}, {vr(p,2)}, {vr(r0+2*k,2)}")
                store_pair(a, b0, b1, CK + 16 + 4 * (n & 3), VO, S_OUT, ii * 16 * 2048, j * 32); n += 1
        if ty == 0: a(f"s_branch {LF}")
    a(f"{LF}:")
    if st: stamps_out(a, name, f"s{S_TYPE}")
    a("s_endpgm")
    a(f"{LLD}:")
    emit_loader(a, c, "l4", switch=dict(xstr=7168, s_at=S_SW, xsrd=S_X2, wsrd=S_W2, win=WIN4))
    a(f"L_{name}_end:\ns_endpgm")
    a(KD.format(name=name, vgpr=256))
    return f"; @launch kernel={name} grid=(256,1,1) block=(512,1,1) lds={lds}"
```

```python
import sys, importlib, gen
for kv in sys.argv[2:]:
    k_, v_ = kv.split("=", 1); setattr(gen, k_, eval(v_, vars(gen)))
hdr = open('gated_mix__linear_attn_block__mixer_s_mlp__prompt.s.ref').read().split("\n")
head = [l for l in hdr if l.startswith(";") and "@launch" not in l and "Override" not in l and "grid=ceil" not in l]
s = gen.build([gen.gen_l1, gen.gen_l2, gen.gen_l3, gen.gen_l4], st=False)
open(sys.argv[1], 'w').write("\n".join(head) + "\n" + s)
```

```python
from core2 import *
import struct
def f2u(x): return struct.unpack("<I", struct.pack("<f", x))[0]
MB = 1 << 20
WS_PQ = 0; WS_H = 4*MB; WS_A = 8*MB; WS_X1 = 12*MB; WS_H2 = 16*MB
WS_KVP = 32*MB
KVP_STRIDE = 4352
WS_KVA = 34*MB
WS_KVZ = 34*MB + 65536
WS_STAT = 35*MB
WS_CS1 = 35*MB + 65536
WS_CS3 = 35*MB + 262144
WS_ST1 = 36*MB
LOG2E = 1.4426950408889634
GC0 = -2.0 * 0.7978845608028654 * LOG2E
GC1 = GC0 * 0.044715
P_X, P_WQKV, P_WO, P_BX, P_W1, P_W2, P_W3, P_W4, P_GATE, P_OUT, P_DBG, P_WS = [64 + 2 * i for i in range(12)]
S_WS = 16
SC = "sc0 sc1"
PF4_N0 = 1
PFFLAG = ""
FL = {}
PF1 = []
TAILPF = True
ROT = {1: (4, 2), 2: (0, 0), 3: (0, 0), 4: (0, 0)}
WIN4 = 4
S_PF = 44; S_PFO = 48; S_PFS = 49
def pf_touch(a, vd, va, flag=None):
    a(f"buffer_load_dword v{vd}, v{va}, s[{S_PF}:{S_PF+3}], s{S_PFO} offen {PFFLAG if flag is None else flag}")
    a(f"s_add_u32 s{S_PFO}, s{S_PFO}, s{S_PFS}")

def srd(a, d, p, size, off=0):
    if off:
        a(f"s_add_u32 s{d}, s{p}, {off}"); a(f"s_addc_u32 s{d+1}, s{p+1}, 0")
    else:
        a(f"s_mov_b32 s{d}, s{p}"); a(f"s_mov_b32 s{d+1}, s{p+1}")
    a(f"s_mov_b32 s{d+2}, {size}"); a(f"s_mov_b32 s{d+3}, 0x20000")

ST2 = False
CODEPF = True
def kernel_head(a, name):
    a(f".globl {name}\n.p2align 8\n.type {name},@function\n{name}:")
    if ST2: a("s_memtime s[88:89]")
    a(f"s_cmp_ge_u32 s2, 256\ns_cbranch_scc1 L_{name}_end")
    a("s_load_dwordx16 s[64:79], s[0:1], 0")
    a("s_load_dwordx8 s[80:87], s[0:1], 64")
    a(f"v_lshrrev_b32 v1, 6, v0\ns_nop 0\nv_readfirstlane_b32 s{S_WAVE}, v1")
    if CODEPF:
        a(f"s_getpc_b64 s[{S_PF}:{S_PF+1}]\nL_{name}_pc:")
        a(f"s_sub_u32 s{S_PF}, s{S_PF}, L_{name}_pc-{name}\ns_subb_u32 s{S_PF+1}, s{S_PF+1}, 0")
        a(f"s_mov_b32 s{S_PF+2}, L_text_end-{name}\ns_mov_b32 s{S_PF+3}, 0x20000")
        a(f"v_lshlrev_b32 v2, 7, v0")
        a(f"buffer_load_dword v255, v2, s[{S_PF}:{S_PF+3}], 0 offen")

def unpack8(a, src, dst):
    for u in range(4):
        a(f"v_lshlrev_b32 v{dst+2*u}, 16, v{src+u}")
        a(f"v_and_b32 v{dst+2*u+1}, 0xffff0000, v{src+u}")

def allreduce(a, regs, tmps, lo=0):
    DP = ["quad_perm:[1,0,3,2]", "quad_perm:[2,3,0,1]", "row_half_mirror", "row_mirror"]
    pad = max(0, 3 - len(regs))
    for lv in range(lo, 4):
        mod = DP[lv] if lo == 0 else ["quad_perm:[1,0,3,2]", "quad_perm:[2,3,0,1]", "row_ror:4", "row_ror:8"][lv]
        if pad: a(f"s_nop {pad-1}")
        for r in regs: a(f"v_add_f32_dpp v{r}, v{r}, v{r} {mod} row_mask:0xf bank_mask:0xf")
    for ins in ("v_permlane16_swap_b32", "v_permlane32_swap_b32"):
        for r, t in zip(regs, tmps): a(f"v_mov_b32 v{t}, v{r}")
        a("s_nop 1")
        for r, t in zip(regs, tmps): a(f"{ins} v{r}, v{t}")
        a("s_nop 1")
        for r, t in zip(regs, tmps): a(f"v_add_f32 v{r}, v{r}, v{t}")

def colsum_block(a, srd_w, wstride, s_row0, s_colb, s_dst, vl, base, part=3):
    VA = base; L = base + 4; F = base + 40; ACC = base + 48; TM = base + 56
    if part & 1:
        a(f"v_lshrrev_b32 v{VA}, 3, v{vl}")
        a(f"v_add_u32 v{VA}, s{s_row0}, v{VA}")
        a(f"v_mul_u32_u24 v{VA}, {wstride}, v{VA}")
        a(f"v_and_b32 v{VA+1}, 7, v{vl}")
        a(f"v_lshl_add_u32 v{VA}, v{VA+1}, 4, v{VA}")
        a(f"v_add_u32 v{VA}, s{s_colb}, v{VA}")
        for it in range(8):
            a(f"s_mov_b32 s{S_T3}, {it*8*wstride}")
            a(f"buffer_load_dwordx4 {vr(L+4*it,4)}, v{VA}, s[{srd_w}:{srd_w+3}], s{S_T3} offen {CSFLAG}")
    if not part & 2: return
    for it in range(8):
        if part == 3: a(f"s_waitcnt vmcnt({7-it})")
        if it == 0: unpack8(a, L, ACC)
        else:
            unpack8(a, L + 4 * it, F)
            for u in range(0, 8, 2): a(f"v_pk_add_f32 {vr(ACC+u,2)}, {vr(ACC+u,2)}, {vr(F+u,2)}")
    allreduce(a, list(range(ACC, ACC + 8)), list(range(TM, TM + 8)), lo=3)
    a(f"v_lshlrev_b32 v{VA}, 5, v{vl}")
    a("s_mov_b64 exec, 0xff")
    a(f"buffer_store_dwordx4 {vr(ACC,4)}, v{VA}, s[{S_WS}:{S_WS+3}], s{s_dst} offen {SC}")
    a(f"buffer_store_dwordx4 {vr(ACC+4,4)}, v{VA}, s[{S_WS}:{S_WS+3}], s{s_dst} offen offset:16 {SC}")
    a("s_mov_b64 exec, -1")

def out_addr(a, c, vo, vl, vt, s_row0, s_colb, ostride, wnb=None):
    a(f"s_lshr_b32 s{S_T0}, s{S_WAVE}, {log2(c.WN)}")
    a(f"s_and_b32 s{S_T1}, s{S_WAVE}, {c.WN-1}")
    a(f"s_mul_i32 s{S_T0}, s{S_T0}, {c.wtm}"); a(f"s_add_u32 s{S_T0}, s{S_T0}, s{s_row0}")
    a(f"s_mul_i32 s{S_T1}, s{S_T1}, {wnb or c.wtn*2}"); a(f"s_add_u32 s{S_T1}, s{S_T1}, s{s_colb}")
    a(f"v_and_b32 v{vo}, 15, v{vl}"); a(f"v_add_u32 v{vo}, s{S_T0}, v{vo}")
    a(f"v_mul_u32_u24 v{vo}, {ostride}, v{vo}")
    a(f"v_add_u32 v{vo}, s{S_T1}, v{vo}")
    a(f"v_bfe_u32 v{vt}, v{vl}, 5, 1"); a(f"v_lshl_add_u32 v{vo}, v{vt}, 4, v{vo}")
    a(f"v_bfe_u32 v{vt}, v{vl}, 4, 1"); a(f"v_lshl_add_u32 v{vo}, v{vt}, 5, v{vo}")

def store_pair(a, b0, b1, q, vo, srd_o, soff, imm):
    a(f"v_cvt_pk_bf16_f32 v{q}, v{b0}, v{b0+1}"); a(f"v_cvt_pk_bf16_f32 v{q+1}, v{b0+2}, v{b0+3}")
    a(f"v_cvt_pk_bf16_f32 v{q+2}, v{b1}, v{b1+1}"); a(f"v_cvt_pk_bf16_f32 v{q+3}, v{b1+2}, v{b1+3}")
    a(f"s_mov_b32 s{S_T3}, {soff}"); a("s_nop 0")
    a(f"v_permlane16_swap_b32 v{q}, v{q+2}"); a(f"v_permlane16_swap_b32 v{q+1}, v{q+3}")
    a(f"buffer_store_dwordx4 {vr(q,4)}, v{vo}, s[{srd_o}:{srd_o+3}], s{S_T3} offen offset:{imm} {SC}")

def gelu8(a, b0, b1, T, VC1, VC0):
    P = [b0, b0 + 2, b1, b1 + 2]
    for k, p in enumerate(P): a(f"v_pk_mul_f32 {vr(T+2*k,2)}, {vr(p,2)}, {vr(p,2)}")
    for k, p in enumerate(P): a(f"v_pk_fma_f32 {vr(T+2*k,2)}, {vr(T+2*k,2)}, {vr(VC1,2)}, {vr(VC0,2)}")
    for k, p in enumerate(P): a(f"v_pk_mul_f32 {vr(T+2*k,2)}, {vr(T+2*k,2)}, {vr(p,2)}")
    for k in range(8): a(f"v_exp_f32 v{T+k}, v{T+k}")
    for k in range(4): a(f"v_pk_add_f32 {vr(T+2*k,2)}, {vr(T+2*k,2)}, 1.0 op_sel_hi:[1,0]")
    for k in range(8): a(f"v_rcp_f32 v{T+k}, v{T+k}")
    for k, p in enumerate(P): a(f"v_pk_mul_f32 {vr(p,2)}, {vr(p,2)}, {vr(T+2*k,2)}")

def phi8(a, b0, b1, T, VL2E, VEPS):
    P = [b0, b0 + 2, b1, b1 + 2]
    for k, p in enumerate(P): a(f"v_pk_mul_f32 {vr(T+2*k,2)}, {vr(p,2)}, {vr(VL2E,2)}")
    for k in range(8): a(f"v_exp_f32_e64 v{T+k}, v{T+k} clamp")
    for p in P: a(f"v_max_f32 v{p}, 0, v{p}"); a(f"v_max_f32 v{p+1}, 0, v{p+1}")
    for k, p in enumerate(P): a(f"v_pk_add_f32 {vr(p,2)}, {vr(p,2)}, {vr(VEPS,2)}")
    for k, p in enumerate(P): a(f"v_pk_add_f32 {vr(p,2)}, {vr(p,2)}, {vr(T+2*k,2)}")

def atomic_inc(a, srd_d, off, vt, ret=None):
    a(f"v_mov_b32 v{vt}, 1"); a(f"v_mov_b32 v{vt+1}, {off}") if isinstance(off, int) else a(f"v_mov_b32 v{vt+1}, s{off[0]}")
    a("s_mov_b64 exec, 1")
    a(f"buffer_atomic_add v{vt}, v{vt+1}, s[{srd_d}:{srd_d+3}], 0 offen {'sc0 sc1' if ret else 'sc1'}")
    a("s_mov_b64 exec, -1")

def tail_touch(a, ptr, nbytes, wave_off, vl, vtmp, lo=0):
    ninstr = nbytes // 8192
    reps = -(-ninstr // 1024)
    srd(a, S_PF, ptr, lo + nbytes)
    a(f"s_lshl_b32 s{S_T1}, s2, 2\ns_add_u32 s{S_T1}, s{S_T1}, s{S_WAVE}\ns_add_u32 s{S_T1}, s{S_T1}, {(wave_off - 4) & 1023}\ns_and_b32 s{S_T1}, s{S_T1}, 1023")
    a(f"s_lshl_b32 s{S_T1}, s{S_T1}, 13\ns_add_u32 s{S_T1}, s{S_T1}, {lo}")
    a(f"v_lshlrev_b32 v{vtmp}, 7, v{vl}")
    for r in range(reps):
        a(f"buffer_load_dword v{vtmp+1}, v{vtmp}, s[{S_PF}:{S_PF+3}], s{S_T1} offen")
        if r + 1 < reps: a(f"s_add_u32 s{S_T1}, s{S_T1}, {8192*1024}")
    return reps
CSFLAG = ""
MID = (3, 12)
TP = {}
def tails(a, k):
    n = 0
    for (p, lo, nb, off) in TP.get(k, []):
        n += tail_touch(a, globals()[p], nb, off, 1, 56, lo)
    return n
def gen_l1(a, st=False):
    name = "l1_kernel"
    c = Cfg(256, 128, 2, 2, 3, 16)
    c.xflag = FL.get('1x', ''); c.wflag = FL.get('1w', '')
    AUX = c.ring_bytes
    AUX2 = AUX + 2048
    AUXF = AUX2 + 512
    lds = AUXF + 64
    S_DBG = 40; S_GT = 52; S_W1S = 52; S_W3S = 52
    S_TYPE = 56; S_IDX = 57; S_MT = 58; S_JM = 50; S_JN = 51; S_PFL = 59
    kernel_head(a, name)
    a("s_and_b32 s3, s2, 7\ns_lshr_b32 s4, s2, 3")
    a("s_lshr_b32 s5, s3, 2\ns_and_b32 s6, s3, 3")
    a("s_lshr_b32 s7, s4, 3\ns_and_b32 s4, s4, 7")
    a(f"s_lshl_b32 s5, s5, 2\ns_add_u32 s{S_MT}, s5, s7")
    a(f"s_mov_b32 s{S_JM}, s7\ns_mov_b32 s{S_JN}, s4\ns_mov_b32 s{S_PFL}, 128")
    a(f"s_lshl_b32 s{S_ROW0}, s{S_MT}, 8")
    a(f"s_mul_i32 s{S_ROT}, s7, {ROT[1][0]}\ns_mul_i32 s{S_T0}, s4, {ROT[1][1]}\ns_add_u32 s{S_ROT}, s{S_ROT}, s{S_T0}")
    a(f"s_cmp_ge_u32 s{S_ROT}, 16\ns_cselect_b32 s{S_T0}, 16, 0\ns_sub_u32 s{S_ROT}, s{S_ROT}, s{S_T0}")
    a(f"s_mov_b32 s{S_TYPE}, 1\ns_cmp_lt_u32 s4, 2\ns_cmov_b32 s{S_TYPE}, 0\ns_cmp_ge_u32 s4, 6\ns_cmov_b32 s{S_TYPE}, 2")
    a(f"s_mov_b32 s{S_XSTR}, 2048\ns_mov_b32 s{S_KX}, 0\ns_mov_b32 s{S_KW}, 0")
    a("s_waitcnt lgkmcnt(0)")
    srd(a, S_XSRD, P_X, 4 * MB)
    srd(a, S_WS, P_WS, 256 * MB)
    srd(a, S_DBG, P_DBG, 256)
    srd(a, S_WSRD, P_WQKV, 6 * MB)
    LQ, LKV, LH, LJ = [a.label("l1_" + x) for x in ("tq", "tkv", "th", "tj")]
    a(f"s_mov_b32 s{S_WSTR}, 6144\ns_mov_b32 s{S_CA}, 128\ns_mov_b32 s{S_CBB}, 64")
    a(f"s_cmp_eq_u32 s{S_TYPE}, 1\ns_cbranch_scc1 {LKV}")
    a(f"s_cmp_eq_u32 s{S_TYPE}, 2\ns_cbranch_scc1 {LH}")
    a(f"s_lshl_b32 s{S_IDX}, s6, 1\ns_add_u32 s{S_IDX}, s{S_IDX}, s4\ns_lshl_b32 s{S_CB}, s{S_IDX}, 8\ns_branch {LJ}")
    a(f"{LKV}:")
    a(f"s_lshl_b32 s{S_IDX}, s6, 2\ns_add_u32 s{S_IDX}, s{S_IDX}, s4\ns_sub_u32 s{S_IDX}, s{S_IDX}, 2")
    a(f"s_lshl_b32 s{S_CB}, s{S_IDX}, 7\ns_add_u32 s{S_CB}, s{S_CB}, 2048\ns_mov_b32 s{S_CA}, 64\ns_mov_b32 s{S_CBB}, 2048\ns_mov_b32 s{S_PFL}, 2048\ns_branch {LJ}")
    a(f"{LH}:")
    a(f"s_lshl_b32 s{S_IDX}, s6, 1\ns_add_u32 s{S_IDX}, s{S_IDX}, s4\ns_sub_u32 s{S_IDX}, s{S_IDX}, 6\ns_lshl_b32 s{S_CB}, s{S_IDX}, 8")
    a(f"s_mov_b32 s{S_WSTR}, 2048")
    srd(a, S_WSRD, P_W1, 2 * MB)
    a(f"{LJ}:")
    a(f"s_lshl_b32 s{S_WSTEP}, s{S_WSTR}, 6")
    LLD = a.label("l1_loader")
    a(f"s_cmp_ge_u32 s{S_WAVE}, 4\ns_cbranch_scc1 {LLD}")
    R = CRegs(c, 0)
    VTID = R.free; VLN = VTID + 1; VT = VTID + 2
    a(f"v_mov_b32 v{VTID}, v0"); a(f"v_and_b32 v{VLN}, 63, v0")
    if st: a("s_memtime s[90:91]")
    X0, X1_, G0 = 0, 8, 16
    a(f"s_lshl_b32 s{S_T0}, s2, 3\ns_lshl_b32 s{S_T1}, s{S_WAVE}, 1\ns_add_u32 s60, s{S_T0}, s{S_T1}   ; row")
    a(f"s_lshl_b32 s{S_T0}, s60, 11")
    a(f"v_lshlrev_b32 v{VT}, 4, v{VLN}")
    for rr in range(2):
        for hh in range(2):
            a(f"buffer_load_dwordx4 {vr(8*rr+4*hh,4)}, v{VT}, s[{S_XSRD}:{S_XSRD+3}], s{S_T0} offen offset:{rr*2048+hh*1024} nt")
    srd(a, S_GT, P_GATE, 2048)
    for hh in range(2):
        a(f"buffer_load_dwordx4 {vr(G0+4*hh,4)}, v{VT}, s[{S_GT}:{S_GT+3}], 0 offen offset:{hh*1024}")
    LNC0 = a.label("l1_nocs0")
    a(f"s_cmp_lg_u32 s{S_WAVE}, 0\ns_cbranch_scc1 {LNC0}")
    a("s_lshr_b32 s61, s2, 4\ns_and_b32 s63, s2, 15")
    a(f"s_lshl_b32 s62, s61, 12\ns_lshl_b32 s{S_T3}, s63, 8\ns_add_u32 s62, s62, s{S_T3}\ns_add_u32 s62, s62, {WS_CS1}")
    a("s_lshl_b32 s61, s61, 6\ns_lshl_b32 s63, s63, 7")
    srd(a, S_W1S, P_W1, 2 * MB)
    colsum_block(a, S_W1S, 2048, 61, 63, 62, VLN, 128, part=1)
    a(f"{LNC0}:")
    VPF = VT + 10; VPD = VT + 11
    a(f"s_and_b32 s{S_T2}, s{S_WAVE}, 1")
    a(f"s_cmp_lt_u32 s{S_WAVE}, 2")
    for u in range(3): a(f"s_cselect_b32 s{S_PF+u}, s{S_XSRD+u}, s{S_WSRD+u}")
    a(f"s_mov_b32 s{S_PF+3}, 0x20000")
    LPW, LPJ = a.label("l1_pfw"), a.label("l1_pfj")
    a(f"s_cbranch_scc0 {LPW}")
    a(f"s_lshl_b32 s{S_T1}, s{S_JN}, 5\ns_add_u32 s{S_T1}, s{S_T1}, s{S_ROW0}")
    a(f"v_lshrrev_b32 v{VPF}, 1, v{VLN}\nv_add_u32 v{VPF}, s{S_T1}, v{VPF}\nv_lshlrev_b32 v{VPF}, 11, v{VPF}")
    a(f"v_and_b32 v{VPD}, 1, v{VLN}\nv_lshl_add_u32 v{VPF}, v{VPD}, 7, v{VPF}")
    a(f"s_lshl_b32 s{S_PFO}, s{S_T2}, 8\ns_mov_b32 s{S_PFS}, 512\ns_branch {LPJ}")
    a(f"{LPW}:")
    a(f"v_lshrrev_b32 v{VPF}, 1, v{VLN}\nv_lshlrev_b32 v{VPF}, 2, v{VPF}\nv_add_u32 v{VPF}, s{S_JM}, v{VPF}\nv_mul_lo_u32 v{VPF}, v{VPF}, s{S_WSTR}")
    a(f"v_and_b32 v{VPD}, 1, v{VLN}\nv_mul_lo_u32 v{VPD}, v{VPD}, s{S_PFL}\nv_add_u32 v{VPF}, v{VPF}, v{VPD}\nv_add_u32 v{VPF}, s{S_CB}, v{VPF}")
    a(f"s_lshl_b32 s{S_PFS}, s{S_WSTR}, 8\ns_lshl_b32 s{S_PFO}, s{S_WSTR}, 7\ns_mul_i32 s{S_PFO}, s{S_PFO}, s{S_T2}")
    a(f"{LPJ}:")
    n0 = sum(1 for x in PF1 if x == 0)
    for _ in range(n0): pf_touch(a, VPD, VPF, "nt")
    a(f"v_mov_b32 v{VT+1}, {AUXF}\nv_mov_b32 v{VT+2}, 0\nv_mov_b32 v{VT+3}, 0")
    a(f"ds_write_b64 v{VT+1}, {vr(VT+2,2)}")
    emit_compute_setup(a, c, R, VTID, VT + 4)
    F0, F1, FG = 32, 48, 64
    a(f"s_waitcnt vmcnt({n0})")
    for hh in range(2):
        unpack8(a, X0 + 4 * hh, F0 + 8 * hh); unpack8(a, X1_ + 4 * hh, F1 + 8 * hh); unpack8(a, G0 + 4 * hh, FG + 8 * hh)
    S0, S1, D0, D1 = 80, 82, 84, 86
    a(f"v_pk_add_f32 {vr(S0,2)}, {vr(F0,2)}, {vr(F0+2,2)}"); a(f"v_pk_add_f32 {vr(S1,2)}, {vr(F1,2)}, {vr(F1+2,2)}")
    a(f"v_pk_mul_f32 {vr(D0,2)}, {vr(F0,2)}, {vr(FG,2)}"); a(f"v_pk_mul_f32 {vr(D1,2)}, {vr(F1,2)}, {vr(FG,2)}")
    for u in range(2, 16, 2):
        if u >= 4:
            a(f"v_pk_add_f32 {vr(S0,2)}, {vr(S0,2)}, {vr(F0+u,2)}"); a(f"v_pk_add_f32 {vr(S1,2)}, {vr(S1,2)}, {vr(F1+u,2)}")
        a(f"v_pk_fma_f32 {vr(D0,2)}, {vr(F0+u,2)}, {vr(FG+u,2)}, {vr(D0,2)}"); a(f"v_pk_fma_f32 {vr(D1,2)}, {vr(F1+u,2)}, {vr(FG+u,2)}, {vr(D1,2)}")
    for p in (S0, S1, D0, D1): a(f"v_add_f32 v{p}, v{p}, v{p+1}")
    allreduce(a, [S0, S1, D0, D1], [88, 89, 90, 91])
    a(f"v_mul_f32 v{S0}, {f2u(1/1024)}, v{S0}"); a(f"v_mul_f32 v{S1}, {f2u(1/1024)}, v{S1}")
    for u in range(0, 16, 2):
        a(f"v_pk_add_f32 {vr(F0+u,2)}, {vr(F0+u,2)}, {vr(S0,2)} op_sel_hi:[1,0] neg_lo:[0,1] neg_hi:[0,1]")
        a(f"v_pk_add_f32 {vr(F1+u,2)}, {vr(F1+u,2)}, {vr(S1,2)} op_sel_hi:[1,0] neg_lo:[0,1] neg_hi:[0,1]")
    Q0, Q1 = 92, 94
    a(f"v_pk_mul_f32 {vr(Q0,2)}, {vr(F0,2)}, {vr(F0,2)}"); a(f"v_pk_mul_f32 {vr(Q1,2)}, {vr(F1,2)}, {vr(F1,2)}")
    for u in range(2, 16, 2):
        a(f"v_pk_fma_f32 {vr(Q0,2)}, {vr(F0+u,2)}, {vr(F0+u,2)}, {vr(Q0,2)}"); a(f"v_pk_fma_f32 {vr(Q1,2)}, {vr(F1+u,2)}, {vr(F1+u,2)}, {vr(Q1,2)}")
    a(f"v_add_f32 v{Q0}, v{Q0}, v{Q0+1}"); a(f"v_add_f32 v{Q1}, v{Q1}, v{Q1+1}")
    allreduce(a, [Q0, Q1], [88, 89])
    O0, O1 = 96, 100
    a(f"v_mov_b32 v88, {f2u(1e-5)}")
    a(f"v_fmac_f32 v88, {f2u(1/1024)}, v{Q0}"); a(f"v_mov_b32 v89, {f2u(1e-5)}"); a(f"v_fmac_f32 v89, {f2u(1/1024)}, v{Q1}")
    a(f"v_mul_f32 v{D0}, {f2u(-LOG2E)}, v{D0}"); a(f"v_mul_f32 v{D1}, {f2u(-LOG2E)}, v{D1}")
    a(f"v_rsq_f32 v{O0}, v88"); a(f"v_rsq_f32 v{O1}, v89"); a(f"v_exp_f32 v{D0}, v{D0}"); a(f"v_exp_f32 v{D1}, v{D1}")
    a("s_nop 0")
    a(f"v_mul_f32 v{O0+1}, v{S0}, v{O0}"); a(f"v_mul_f32 v{O1+1}, v{S1}, v{O1}")
    a(f"v_add_f32 v{D0}, 1.0, v{D0}"); a(f"v_add_f32 v{D1}, 1.0, v{D1}")
    a(f"v_rcp_f32 v{O0+2}, v{D0}"); a(f"v_rcp_f32 v{O1+2}, v{D1}")
    a(f"v_mov_b32 v{O0+3}, 0"); a(f"v_mov_b32 v{O1+3}, 0")
    a(f"s_lshl_b32 s{S_T0}, s60, 4\ns_add_u32 s{S_T0}, s{S_T0}, {WS_STAT}")
    a(f"v_mov_b32 v{VT}, 0")
    a("s_mov_b64 exec, 1")
    a(f"buffer_store_dwordx4 {vr(O0,4)}, v{VT}, s[{S_WS}:{S_WS+3}], s{S_T0} offen {SC}")
    a(f"buffer_store_dwordx4 {vr(O1,4)}, v{VT}, s[{S_WS}:{S_WS+3}], s{S_T0} offen offset:16 {SC}")
    a("s_mov_b64 exec, -1")
    LNC = a.label("l1_nocs")
    a(f"s_cmp_lg_u32 s{S_WAVE}, 0\ns_cbranch_scc1 {LNC}")
    colsum_block(a, S_W1S, 2048, 61, 63, 62, VLN, 128, part=2)
    a(f"{LNC}:")
    def hk1(): a("s_waitcnt vmcnt(0)")
    def hk2():
        LX = a.label("l1_hk2")
        a(f"s_cmp_lg_u32 s{S_WAVE}, 0\ns_cbranch_scc1 {LX}")
        atomic_inc(a, S_DBG, 128, VT)
        a(f"{LX}:")
    hooks = [(7, hk1), (8, hk2)] + [(x, (lambda: pf_touch(a, VPD, VPF, "nt"))) for x in PF1 if x > 0]
    if MID:
        lo, span = MID
        a(f"s_lshr_b32 s{S_PFS}, s2, 3\ns_mul_i32 s{S_PFS}, s{S_PFS}, {span}\ns_lshr_b32 s{S_PFS}, s{S_PFS}, 5\ns_add_u32 s{S_PFS}, s{S_PFS}, {lo}")
        def mid():
            LE = a.label("l1_mide"); L1_ = a.label("l1_mid1"); L2_ = a.label("l1_mid2")
            a(f"v_lshlrev_b32 v{VPF}, 7, v{VLN}\ns_lshl_b32 s{S_PFO}, s2, 13")
            a(f"s_cmp_eq_u32 s{S_WAVE}, 1\ns_cbranch_scc1 {L1_}\ns_cmp_eq_u32 s{S_WAVE}, 2\ns_cbranch_scc1 {L2_}\ns_cmp_eq_u32 s{S_WAVE}, 3\ns_cbranch_scc1 {LE}")
            for p in (P_W2, P_WO):
                srd(a, S_PF, p, 2 * MB)
                a(f"buffer_load_dword v{VPD}, v{VPF}, s[{S_PF}:{S_PF+3}], s{S_PFO} offen")
            a(f"s_branch {LE}")
            for L_, p in ((L1_, P_W3), (L2_, P_W4)):
                a(f"{L_}:")
                srd(a, S_PF, p, 7 * MB)
                for r in range(4):
                    a(f"buffer_load_dword v{VPD}, v{VPF}, s[{S_PF}:{S_PF+3}], s{S_PFO} offen")
                    a(f"s_add_u32 s{S_PFO}, s{S_PFO}, {2*MB}")
                a(f"s_branch {LE}")
            a(f"{LE}:")
        hooks.append((f"s{S_PFS}", mid))
    for r in range(128): a(f"v_mov_b32 v{r}, 0")
    a("s_waitcnt lgkmcnt(0)")
    LCKV, LCH = a.label("l1_ckv"), a.label("l1_ch")
    a(f"s_cmp_eq_u32 s{S_TYPE}, 1\ns_cbranch_scc1 {LCKV}")
    emit_mainloop(a, c, R, "l1w", wfirst=True, stamp="s_memtime s[92:93]" if st else None, hooks=hooks)
    if st: a("s_memtime s[94:95]")
    VO = VT; CK = R.frag0
    a(f"s_cmp_eq_u32 s{S_TYPE}, 2\ns_cbranch_scc1 {LCH}")
    out_addr(a, c, VO, VLN, VT + 1, S_ROW0, S_CB, 2048)
    a(f"v_mov_b32 v{CK}, {f2u(LOG2E)}\nv_mov_b32 v{CK+1}, {f2u(LOG2E)}\nv_mov_b32 v{CK+2}, {f2u(1e-6)}\nv_mov_b32 v{CK+3}, {f2u(1e-6)}")
    a("s_nop 7")
    n = 0
    for i in range(c.mb):
        for j in range(0, c.nb, 2):
            b0, b1 = R.accb(i, j), R.accb(i, j + 1)
            phi8(a, b0, b1, CK + 8, CK, CK + 2)
            store_pair(a, b0, b1, CK + 16 + 4 * (n & 3), VO, S_WS, WS_PQ + i * 16 * 2048, j * 32); n += 1
    a(f"s_branch L_{name}_fin")
    a(f"{LCH}:")
    out_addr(a, c, VO, VLN, VT + 1, S_ROW0, S_CB, 2048)
    a(f"v_mov_b32 v{CK}, {f2u(GC1)}\nv_mov_b32 v{CK+1}, {f2u(GC1)}\nv_mov_b32 v{CK+2}, {f2u(GC0)}\nv_mov_b32 v{CK+3}, {f2u(GC0)}")
    STt = CK + 32; CS = CK + 48
    a(f"s_lshr_b32 s{S_T0}, s{S_WAVE}, 1\ns_and_b32 s{S_T1}, s{S_WAVE}, 1")
    a(f"s_lshl_b32 s{S_T0}, s{S_T0}, 10\ns_add_u32 s{S_T0}, s{S_T0}, {AUX}")
    a(f"v_and_b32 v{VT+1}, 15, v{VLN}\nv_lshl_add_u32 v{VT+1}, v{VT+1}, 3, s{S_T0}")
    a(f"s_lshl_b32 s{S_T1}, s{S_T1}, 8\ns_add_u32 s{S_T1}, s{S_T1}, {AUX2}")
    a(f"v_lshrrev_b32 v{VT+2}, 4, v{VLN}\nv_lshl_add_u32 v{VT+2}, v{VT+2}, 4, s{S_T1}")
    a("s_barrier")
    for i in range(c.mb): a(f"ds_read_b64 {vr(STt+2*i,2)}, v{VT+1} offset:{i*128}")
    for j in range(c.nb): a(f"ds_read_b128 {vr(CS+4*j,4)}, v{VT+2} offset:{j*64}")
    a("s_waitcnt lgkmcnt(0)")
    n = 0
    for i in range(c.mb):
        for j in range(0, c.nb, 2):
            b0, b1 = R.accb(i, j), R.accb(i, j + 1)
            T8 = CK + 8
            for k, (p, cs) in enumerate(((b0, CS + 4 * j), (b0 + 2, CS + 4 * j + 2), (b1, CS + 4 * j + 4), (b1 + 2, CS + 4 * j + 6))):
                a(f"v_pk_mul_f32 {vr(T8+2*k,2)}, {vr(cs,2)}, {vr(STt+2*i,2)} op_sel:[0,1] op_sel_hi:[1,1]")
            for k, p in enumerate((b0, b0 + 2, b1, b1 + 2)):
                a(f"v_pk_fma_f32 {vr(p,2)}, {vr(p,2)}, {vr(STt+2*i,2)}, {vr(T8+2*k,2)} op_sel_hi:[1,0,1] neg_lo:[0,0,1] neg_hi:[0,0,1]")
            gelu8(a, b0, b1, T8, CK, CK + 2)
            store_pair(a, b0, b1, CK + 16 + 4 * (n & 3), VO, S_WS, WS_H + i * 16 * 2048, j * 32); n += 1
    a(f"s_branch L_{name}_fin")
    a(f"{LCKV}:")
    emit_mainloop(a, c, R, "l1x", wfirst=False, stamp="s_memtime s[92:93]" if st else None, hooks=hooks)
    if st: a("s_memtime s[94:95]")
    a(f"v_mov_b32 v{CK}, {f2u(LOG2E)}\nv_mov_b32 v{CK+1}, {f2u(LOG2E)}\nv_mov_b32 v{CK+2}, {f2u(1e-6)}\nv_mov_b32 v{CK+3}, {f2u(1e-6)}")
    ONES = CK + 4; KV = CK + 16; Z = CK + 32; OP = CK + 40
    for u in range(4): a(f"v_mov_b32 v{ONES+u}, 0x3f803f80")
    for u in range(24): a(f"v_mov_b32 v{KV+u}, 0")
    a("s_nop 7")
    for ip in range(0, c.mb, 2):
        O = OP + 16 * ((ip // 2) & 1)
        for db in range(2):
            phi8(a, R.accb(ip, db), R.accb(ip + 1, db), CK + 8, CK, CK + 2)
        for jb in range(4):
            for hh in range(2):
                b = R.accb(ip + hh, jb)
                a(f"v_cvt_pk_bf16_f32 v{O+4*jb+2*hh}, v{b}, v{b+1}"); a(f"v_cvt_pk_bf16_f32 v{O+4*jb+2*hh+1}, v{b+2}, v{b+3}")
        a("s_nop 1")
        for db in range(2):
            for eb in range(2):
                k = KV + 4 * (db * 2 + eb)
                a(f"{MFMA} {vr(k,4)}, {vr(O+4*db,4)}, {vr(O+8+4*eb,4)}, {vr(k,4)}")
            a(f"{MFMA} {vr(Z+4*db,4)}, {vr(O+4*db,4)}, {vr(ONES,4)}, {vr(Z+4*db,4)}")
    a("s_nop 7\ns_nop 7")
    RED = 2 * c.stage_bytes
    a(f"s_and_b32 s{S_T1}, s{S_WAVE}, 1\ns_mul_i32 s{S_T0}, s{S_T1}, 6144\ns_add_u32 s{S_T0}, s{S_T0}, {RED}")
    a(f"v_lshl_add_u32 v{VT}, v{VLN}, 4, s{S_T0}")
    a(f"s_lshl_b32 s{S_T1}, s{S_T1}, 2\ns_add_u32 s{S_T1}, s{S_T1}, {AUXF}\nv_mov_b32 v{VT+1}, s{S_T1}")
    LW0 = a.label("l1_w0")
    a(f"s_cmp_lt_u32 s{S_WAVE}, 2\ns_cbranch_scc1 {LW0}")
    for u in range(6): a(f"ds_write_b128 v{VT}, {vr(KV+4*u,4)} offset:{u*1024}")
    a(f"v_mov_b32 v{VT+2}, 1")
    a("s_waitcnt lgkmcnt(0)")
    a(f"ds_write_b32 v{VT+1}, v{VT+2}")
    a("s_waitcnt lgkmcnt(0)")
    a(f"s_branch L_{name}_fin")
    a(f"{LW0}:")
    LP = a.label("l1_pollw")
    a(f"{LP}:")
    a(f"ds_read_b32 v{VT+2}, v{VT+1}\ns_waitcnt lgkmcnt(0)\nv_readfirstlane_b32 s{S_T0}, v{VT+2}\ns_cmp_eq_u32 s{S_T0}, 0\ns_cbranch_scc1 {LP}")
    for u in range(6): a(f"ds_read_b128 {vr(4*u,4)}, v{VT} offset:{u*1024}")
    a("s_waitcnt lgkmcnt(0)")
    for u in range(0, 24, 2): a(f"v_pk_add_f32 {vr(KV+u,2)}, {vr(KV+u,2)}, {vr(u,2)}")
    a(f"s_lshl_b32 s60, s{S_IDX}, 1\ns_add_u32 s60, s60, s{S_WAVE}     ; head")
    a(f"s_lshl_b32 s{S_T0}, s60, 3\ns_add_u32 s{S_T0}, s{S_T0}, s{S_MT}\ns_mul_i32 s{S_T0}, s{S_T0}, {KVP_STRIDE}\ns_add_u32 s{S_T0}, s{S_T0}, {WS_KVP}")
    a(f"v_and_b32 v{VT}, 15, v{VLN}\nv_lshlrev_b32 v{VT}, 7, v{VT}\nv_lshrrev_b32 v{VT+1}, 4, v{VLN}\nv_lshl_add_u32 v{VT}, v{VT+1}, 4, v{VT}")
    for db in range(2):
        for eb in range(2):
            a(f"buffer_store_dwordx4 {vr(KV+4*(db*2+eb),4)}, v{VT}, s[{S_WS}:{S_WS+3}], s{S_T0} offen offset:{eb*2048+db*64} {SC}")
    a(f"v_lshlrev_b32 v{VT+1}, 4, v{VT+1}")
    a("s_mov_b32 exec_lo, 0x00010001\ns_mov_b32 exec_hi, 0x00010001")
    a(f"s_add_u32 s{S_T1}, s{S_T0}, 4096")
    for db in range(2):
        a(f"buffer_store_dwordx4 {vr(Z+4*db,4)}, v{VT+1}, s[{S_WS}:{S_WS+3}], s{S_T1} offen offset:{db*64} {SC}")
    a("s_mov_b64 exec, -1")
    a(f"L_{name}_fin:")
    if st:
        a("s_memtime s[96:97]\ns_waitcnt vmcnt(0)\ns_memtime s[98:99]\ns_waitcnt lgkmcnt(0)")
        a(f"s_cmp_lg_u32 s{S_WAVE}, 0\ns_cbranch_scc1 L_{name}_end")
        a("v_mov_b32 v0, s90\nv_mov_b32 v1, s92\nv_mov_b32 v2, s94\nv_mov_b32 v3, s96\nv_mov_b32 v4, s98\nv_mov_b32 v5, s56\nv_mov_b32 v6, 0\nv_mov_b32 v7, 0")
        a(f"s_lshl_b32 s3, s2, 5\ns_add_u32 s3, s3, {64*MB}\nv_mov_b32 v8, s3")
        a(f"buffer_store_dwordx4 v[0:3], v8, s[{S_WS}:{S_WS+3}], 0 offen\nbuffer_store_dwordx4 v[4:7], v8, s[{S_WS}:{S_WS+3}], 0 offen offset:16")
    a("s_endpgm")
    a(f"{LLD}:")
    VL = 1
    def tail1():
        a(f"s_lshl_b32 s60, s2, 2\ns_add_u32 s60, s60, s{S_T0}")
        a(f"s_mul_i32 s61, s60, 1171\ns_lshr_b32 s61, s61, 16     ; /56")
        a("s_mul_i32 s62, s61, 56\ns_sub_u32 s62, s60, s62       ; ns")
        a(f"s_mul_i32 s63, s61, {3584*4}\ns_lshl_b32 s{S_T1}, s62, 8\ns_add_u32 s63, s63, s{S_T1}\ns_add_u32 s63, s63, {WS_CS3}")
        a("s_lshl_b32 s61, s61, 6\ns_lshl_b32 s62, s62, 7")
        srd(a, S_W3S, P_W3, 7 * MB)
        colsum_block(a, S_W3S, 7168, 61, 62, 63, VL, 64, part=1)
        return 8 + tails(a, 1)
    emit_loader(a, c, "l1", tail=tail1)
    VL = 1
    LT = a.label("l1_ltail")
    a(f"s_cmp_lg_u32 s{S_TYPE}, 2\ns_cbranch_scc1 {LT}")
    LP = a.label("l1_pollc")
    a("v_mov_b32 v2, 128")
    a(f"{LP}:")
    a(f"buffer_load_dword v3, v2, s[{S_DBG}:{S_DBG+3}], 0 offen {SC}\ns_waitcnt vmcnt(0)\nv_readfirstlane_b32 s{S_T1}, v3")
    a(f"s_cmp_lt_u32 s{S_T1}, 256\ns_cbranch_scc1 {LP}")
    a(f"s_sub_u32 s{S_T0}, s{S_WAVE}, 4\ns_lshl_b32 s{S_T1}, s{S_T0}, 6\nv_add_u32 v2, s{S_T1}, v{VL}")
    a(f"v_add_u32 v3, s{S_ROW0}, v2\nv_lshlrev_b32 v3, 4, v3")
    a(f"s_mov_b32 s{S_T2}, {WS_STAT}")
    a(f"buffer_load_dwordx2 v[4:5], v3, s[{S_WS}:{S_WS+3}], s{S_T2} offen {SC}")
    a(f"v_lshlrev_b32 v2, 3, v2\nv_add_u32 v2, {AUX}, v2")
    LNC2 = a.label("l1_nocs2")
    a(f"s_cmp_ge_u32 s{S_T0}, 2\ns_cbranch_scc1 {LNC2}")
    a(f"v_add_u32 v6, s{S_T1}, v{VL}\nv_lshlrev_b32 v6, 2, v6")
    a(f"s_lshl_b32 s{S_T2}, s{S_IDX}, 9\ns_add_u32 s{S_T2}, s{S_T2}, {WS_CS1}")
    for ks in range(16):
        a(f"buffer_load_dword v{8+ks}, v6, s[{S_WS}:{S_WS+3}], s{S_T2} offen {SC}")
        a(f"s_add_u32 s{S_T2}, s{S_T2}, 4096")
    a("s_waitcnt vmcnt(0)")
    for w in (8, 4, 2, 1):
        for u in range(w): a(f"v_add_f32 v{8+u}, v{8+u}, v{8+u+w}")
    a(f"v_add_u32 v6, {AUX2}, v6")
    a("ds_write_b32 v6, v8")
    a(f"{LNC2}:")
    a("s_waitcnt vmcnt(0)")
    a("ds_write_b64 v2, v[4:5]")
    a("s_waitcnt lgkmcnt(0)")
    a("s_barrier")
    a(f"{LT}:")
    a(f"s_cmp_ge_u32 s60, 896\ns_cbranch_scc1 L_{name}_end")
    a("s_waitcnt vmcnt(0)")
    colsum_block(a, S_W3S, 7168, 61, 62, 63, VL, 64, part=2)
    a(f"L_{name}_end:\ns_endpgm")
    a(KD.format(name=name, vgpr=256))
    return f"; @launch kernel={name} grid=(256,1,1) block=(512,1,1) lds={lds}"

for b in range(896): assert (b * 1171) >> 16 == b // 56

def build(kernels, st=False):
    a = Asm()
    heads = []
    a('.amdgcn_target "amdgcn-amd-amdhsa--gfx950"\n.text')
    for i, k in enumerate(kernels): heads.append(k(a, st is True or st == i + 1))
    a("L_text_end:\ns_endpgm")
    return "\n".join(heads) + "\n" + a.text()

def stamps_out(a, name, s_type):
    a("s_memtime s[96:97]\ns_waitcnt vmcnt(0)\ns_memtime s[98:99]\ns_waitcnt lgkmcnt(0)")
    a(f"s_cmp_lg_u32 s{S_WAVE}, 0\ns_cbranch_scc1 L_{name}_end")
    a(f"v_mov_b32 v0, s90\nv_mov_b32 v1, s92\nv_mov_b32 v2, s94\nv_mov_b32 v3, s96\nv_mov_b32 v4, s98\nv_mov_b32 v5, {s_type}\nv_mov_b32 v6, 0\nv_mov_b32 v7, 0")
    a(f"s_lshl_b32 s3, s2, 5\ns_add_u32 s3, s3, {64*MB}\nv_mov_b32 v8, s3")
    a(f"buffer_store_dwordx4 v[0:3], v8, s[{S_WS}:{S_WS+3}], 0 offen\nbuffer_store_dwordx4 v[4:7], v8, s[{S_WS}:{S_WS+3}], 0 offen offset:16")

def unswap_unpack(a, q, f0, f1):
    a(f"v_permlane16_swap_b32 v{q}, v{q+2}"); a(f"v_permlane16_swap_b32 v{q+1}, v{q+3}")
    a("s_nop 0")
    for (s_, f) in ((q, f0), (q + 1, f0 + 2), (q + 2, f1), (q + 3, f1 + 2)):
        a(f"v_lshlrev_b32 v{f}, 16, v{s_}"); a(f"v_and_b32 v{f+1}, 0xffff0000, v{s_}")

def qreduce(a, regs, tmps):
    for ins in ("v_permlane16_swap_b32", "v_permlane32_swap_b32"):
        for r, t in zip(regs, tmps): a(f"v_mov_b32 v{t}, v{r}")
        if len(regs) < 3: a("s_nop 1")
        for r, t in zip(regs, tmps): a(f"{ins} v{r}, v{t}")
        if len(regs) < 3: a("s_nop 1")
        for r, t in zip(regs, tmps): a(f"v_add_f32 v{r}, v{r}, v{t}")

WS_O = WS_A
WS_FLG = 37*MB
WS_XCH = 40*MB
def gen_l2(a, st=False):
    name = "l2_kernel"
    c = Cfg(128, 64, 4, 1, 6, 16)
    c.xflag = FL.get('2x', ''); c.wflag = FL.get('2w', '')
    c.prebar = True
    lds = c.ring_bytes + 2048 + 64
    S_XIN = 40; S_MT = 57; S_NT = 58
    kernel_head(a, name)
    a("s_and_b32 s3, s2, 7\ns_lshr_b32 s4, s2, 3")
    a("s_lshr_b32 s5, s3, 1\ns_and_b32 s6, s3, 1")
    a("s_lshr_b32 s7, s4, 3\ns_and_b32 s4, s4, 7")
    a(f"s_lshl_b32 s5, s5, 2\ns_add_u32 s{S_MT}, s5, s7")
    a(f"s_lshl_b32 s6, s6, 3\ns_add_u32 s{S_NT}, s6, s4")
    a(f"s_lshl_b32 s{S_ROW0}, s{S_MT}, 7\ns_lshl_b32 s{S_CB}, s{S_NT}, 7")
    a(f"s_mul_i32 s{S_ROT}, s7, {ROT[2][0]}\ns_mul_i32 s{S_T0}, s4, {ROT[2][1]}\ns_add_u32 s{S_ROT}, s{S_ROT}, s{S_T0}\ns_and_b32 s{S_ROT}, s{S_ROT}, 15")
    a(f"s_mov_b32 s{S_XSTR}, 2048")
    a(f"s_mov_b32 s{S_WSTR}, 2048\ns_mov_b32 s{S_CA}, 128\ns_mov_b32 s{S_CBB}, 64\ns_mov_b32 s{S_WSTEP}, {2048*64}")
    a("s_waitcnt lgkmcnt(0)")
    srd(a, S_WS, P_WS, 256 * MB)
    srd(a, S_XIN, P_X, 4 * MB)
    srd(a, S_XSRD, P_WS, 4 * MB, WS_H)
    srd(a, S_WSRD, P_W2, 2 * MB)
    LLD = a.label("l2_ld")
    a(f"s_cmp_ge_u32 s{S_WAVE}, 4\ns_cbranch_scc1 {LLD}")
    R = CRegs(c, 0)
    VTID = R.free; VLN = VTID + 1; VO = VTID + 2; VA = VTID + 3; VB = VTID + 4; VZ = VTID + 5; VK = VTID + 6; VT = VTID + 8
    XR = (VT + 8 + 3) // 4 * 4
    PQ = XR + 16; KVR = PQ + 16; NUM = KVR + 48; PK = NUM + 48
    assert PK + 16 <= 256
    a(f"v_mov_b32 v{VTID}, v0"); a(f"v_and_b32 v{VLN}, 63, v0")
    if st: a("s_memtime s[90:91]")
    AUXK = c.ring_bytes
    a(f"s_and_b32 s62, s2, 31\ns_lshr_b32 s61, s2, 5")
    a(f"s_mul_i32 s60, s62, {8*KVP_STRIDE}\ns_add_u32 s60, s60, {WS_KVP}")
    a(f"v_bfe_u32 v{VA}, v{VLN}, 2, 3\ns_lshl_b32 s{S_T0}, s{S_WAVE}, 3\nv_add_u32 v{VA}, s{S_T0}, v{VA}     ; e")
    a(f"v_and_b32 v{VB}, 3, v{VLN}      ; o")
    a(f"v_lshlrev_b32 v{VZ}, 7, v{VA}\nv_lshl_add_u32 v{VZ}, v{VB}, 5, v{VZ}")
    a(f"v_lshrrev_b32 v{VT}, 5, v{VLN}\nv_mul_u32_u24 v{VT}, {4*KVP_STRIDE}, v{VT}\nv_add_u32 v{VZ}, v{VZ}, v{VT}")
    a(f"s_mov_b32 s{S_T0}, s60")
    for m in range(4):
        for hh in range(2): a(f"buffer_load_dwordx4 {vr(KVR+8*m+4*hh,4)}, v{VZ}, s[{S_WS}:{S_WS+3}], s{S_T0} offen offset:{hh*16}")
        a(f"s_add_u32 s{S_T0}, s{S_T0}, {KVP_STRIDE}")
    a(f"v_bfe_u32 v{VT}, v{VLN}, 2, 3\nv_mul_u32_u24 v{VT}, {KVP_STRIDE}, v{VT}\nv_lshl_add_u32 v{VT}, v{VB}, 5, v{VT}\nv_add_u32 v{VT}, 4096, v{VT}")
    for hh in range(2): a(f"buffer_load_dwordx4 {vr(KVR+32+4*hh,4)}, v{VT}, s[{S_WS}:{S_WS+3}], s60 offen offset:{hh*16}")
    a(f"v_lshrrev_b32 v{VT}, 4, v{VA}\nv_lshlrev_b32 v{VT}, 10, v{VT}\nv_and_b32 v{VA}, 15, v{VA}\nv_lshl_add_u32 v{VA}, v{VB}, 4, v{VA}\nv_lshl_add_u32 v{VK}, v{VA}, 4, v{VT}\nv_add_u32 v{VK}, {AUXK}, v{VK}")
    a(f"v_lshlrev_b32 v{VK+1}, 4, v{VB}\nv_add_u32 v{VK+1}, {AUXK+2048}, v{VK+1}")
    a(f"s_lshl_b32 s{S_T0}, s61, 19\ns_lshl_b32 s{S_T1}, s{S_WAVE}, 17\ns_add_u32 s63, s{S_T0}, s{S_T1}\ns_lshl_b32 s{S_T1}, s62, 6\ns_add_u32 s63, s63, s{S_T1}")
    a(f"v_and_b32 v{VA}, 15, v{VLN}\nv_lshlrev_b32 v{VA}, 11, v{VA}\nv_and_b32 v{VZ}, 48, v{VLN}\nv_add_u32 v{VA}, v{VA}, v{VZ}")
    a(f"s_add_u32 s{S_T0}, s63, {WS_PQ}")
    for b in range(4):
        a(f"buffer_load_dwordx4 {vr(PQ+4*b,4)}, v{VA}, s[{S_WS}:{S_WS+3}], s{S_T0} offen")
        a(f"s_add_u32 s{S_T0}, s{S_T0}, 32768")
    out_addr(a, c, VO, VLN, VT, S_ROW0, S_CB, 2048)
    n = 0
    for i in range(c.mb):
        for j in range(0, c.nb, 2):
            a(f"s_mov_b32 s{S_T3}, {i*16*2048}")
            a(f"buffer_load_dwordx4 {vr(XR+4*n,4)}, v{VO}, s[{S_XIN}:{S_XIN+3}], s{S_T3} offen offset:{j*32} nt"); n += 1
    emit_compute_setup(a, c, R, VTID, VT)
    for r in range(c.mb * c.nb * 4): a(f"v_mov_b32 v{r}, 0")
    a(f"v_and_b32 v{VB}, 15, v{VLN}\nv_lshlrev_b32 v{VB}, 11, v{VB}")
    a(f"v_bfe_u32 v{VT}, v{VLN}, 5, 1\nv_lshl_add_u32 v{VB}, v{VT}, 4, v{VB}\nv_bfe_u32 v{VT}, v{VLN}, 4, 1\nv_lshl_add_u32 v{VB}, v{VT}, 5, v{VB}")
    a(f"v_add_u32 v{VB}, s63, v{VB}")
    a("s_waitcnt vmcnt(8)")
    for m in range(1, 4):
        for u in range(0, 8, 2): a(f"v_pk_add_f32 {vr(KVR+u,2)}, {vr(KVR+u,2)}, {vr(KVR+8*m+u,2)}")
    ZR = KVR + 32; TM = KVR + 8
    for mod in ("row_ror:4", "row_ror:8"):
        for u in range(8): a(f"v_add_f32_dpp v{ZR+u}, v{ZR+u}, v{ZR+u} {mod} row_mask:0xf bank_mask:0xf")
    for u in range(8): a(f"v_mov_b32 v{TM+u}, v{ZR+u}")
    for u in range(8): a(f"v_mov_b32 v{TM+8+u}, v{KVR+u}")
    for u in range(8): a(f"v_permlane16_swap_b32 v{ZR+u}, v{TM+u}")
    for u in range(8): a(f"v_permlane32_swap_b32 v{KVR+u}, v{TM+8+u}")
    for u in range(8): a(f"v_add_f32 v{ZR+u}, v{ZR+u}, v{TM+u}")
    for u in range(8): a(f"v_add_f32 v{KVR+u}, v{KVR+u}, v{TM+8+u}")
    for u in range(4): a(f"v_cvt_pk_bf16_f32 v{PK+u}, v{KVR+2*u}, v{KVR+2*u+1}")
    for u in range(4): a(f"v_cvt_pk_bf16_f32 v{PK+4+u}, v{ZR+2*u}, v{ZR+2*u+1}")
    a(f"ds_write_b128 v{VK}, {vr(PK,4)}")
    a(f"ds_write_b128 v{VK+1}, {vr(PK+4,4)}")
    a(f"v_lshlrev_b32 v{VK}, 4, v{VLN}\nv_add_u32 v{VK}, {AUXK}, v{VK}\nv_add_u32 v{VK+1}, {AUXK+2048}, v{VZ}")
    a("s_waitcnt lgkmcnt(0)\ns_barrier")
    a(f"ds_read_b128 {vr(KVR+8,4)}, v{VK+1}\nds_read_b128 {vr(KVR,4)}, v{VK}\nds_read_b128 {vr(KVR+4,4)}, v{VK} offset:1024")
    a("s_waitcnt vmcnt(4) lgkmcnt(0)")
    for h in range(4):
        for u in (2, 0, 1):
            a(f"{MFMA} {vr(NUM+12*h+4*u,4)}, {vr(KVR+4*u,4)}, {vr(PQ+4*h,4)}, 0")
    a("s_nop 7")
    for h in range(4): a(f"v_add_f32 v{NUM+12*h+8}, {f2u(1e-6)}, v{NUM+12*h+8}")
    for h in range(4): a(f"v_rcp_f32 v{NUM+12*h+8}, v{NUM+12*h+8}")
    for h in range(4):
        for k in range(0, 8, 2): a(f"v_pk_mul_f32 {vr(NUM+12*h+k,2)}, {vr(NUM+12*h+k,2)}, {vr(NUM+12*h+8,2)} op_sel_hi:[1,0]")
    for h in range(4):
        store_pair(a, NUM + 12 * h, NUM + 12 * h + 4, PK + 4 * h, VB, S_WS, WS_O + h * 32768, 0)
    emit_mainloop(a, c, R, "l2g4", wfirst=True, stamp="s_memtime s[92:93]" if st else None)
    if st: a("s_memtime s[94:95]")
    CK = R.frag0
    a("s_waitcnt vmcnt(0)")
    a("s_nop 4")
    n = 0
    SUM = CK + 32; M2 = CK + 36; TMP = CK + 40
    for i in range(c.mb):
        for j in range(0, c.nb, 2):
            b0, b1 = R.accb(i, j), R.accb(i, j + 1)
            unswap_unpack(a, XR + 4 * n, CK, CK + 4)
            for k, p in enumerate((b0, b0 + 2, b1, b1 + 2)): a(f"v_pk_add_f32 {vr(p,2)}, {vr(p,2)}, {vr(CK+2*k,2)}")
            store_pair(a, b0, b1, CK + 16 + 4 * (n & 3), VO, S_WS, WS_X1 + i * 16 * 2048, j * 32); n += 1
        b = R.accb(i, 0)
        a(f"v_pk_add_f32 {vr(CK+8,2)}, {vr(b,2)}, {vr(b+2,2)}")
        for u in range(4, 16, 2): a(f"v_pk_add_f32 {vr(CK+8,2)}, {vr(CK+8,2)}, {vr(b+u,2)}")
        a(f"v_add_f32 v{SUM+i}, v{CK+8}, v{CK+9}")
    qreduce(a, [SUM + i for i in range(c.mb)], [TMP + i for i in range(c.mb)])
    for i in range(c.mb):
        b = R.accb(i, 0)
        a(f"v_mul_f32 v{CK+8}, {f2u(1/64)}, v{SUM+i}")
        for u in range(0, 16, 2): a(f"v_pk_add_f32 {vr(b+u,2)}, {vr(b+u,2)}, {vr(CK+8,2)} op_sel_hi:[1,0] neg_lo:[0,1] neg_hi:[0,1]")
        a(f"v_pk_mul_f32 {vr(CK+10,2)}, {vr(b,2)}, {vr(b,2)}")
        for u in range(2, 16, 2): a(f"v_pk_fma_f32 {vr(CK+10,2)}, {vr(b+u,2)}, {vr(b+u,2)}, {vr(CK+10,2)}")
        a(f"v_add_f32 v{M2+i}, v{CK+10}, v{CK+11}")
    qreduce(a, [M2 + i for i in range(c.mb)], [TMP + i for i in range(c.mb)])
    a(f"s_lshl_b32 s{S_T0}, s{S_WAVE}, 5\ns_add_u32 s{S_T0}, s{S_T0}, s{S_ROW0}\ns_lshl_b32 s{S_T0}, s{S_T0}, 3")
    a(f"s_lshl_b32 s{S_T1}, s{S_NT}, 14")
    a(f"s_add_u32 s{S_T0}, s{S_T0}, s{S_T1}\ns_add_u32 s{S_T0}, s{S_T0}, {WS_ST1}")
    a(f"v_lshlrev_b32 v{VT}, 3, v{VLN}")
    for i in range(c.mb): a(f"v_mov_b32 v{CK+2*i}, v{SUM+i}"); a(f"v_mov_b32 v{CK+2*i+1}, v{M2+i}")
    a("s_mov_b64 exec, 0xffff")
    for i in range(c.mb):
        a(f"buffer_store_dwordx2 {vr(CK+2*i,2)}, v{VT}, s[{S_WS}:{S_WS+3}], s{S_T0} offen offset:{i*128} {SC}")
    a("s_mov_b64 exec, -1")
    if st: stamps_out(a, name, 0)
    a("s_endpgm")
    a(f"{LLD}:")
    emit_loader(a, c, "l2g4", xshift=[-1, 1, -2, 2], tail=lambda: tails(a, 2))
    a(f"s_cmp_lg_u32 s{S_WAVE}, 4\ns_cbranch_scc1 L_{name}_end")
    a(f"v_lshlrev_b32 v2, 2, v1\nv_mov_b32 v3, 0\ns_lshl_b32 s{S_T0}, s2, 8\ns_add_u32 s{S_T0}, s{S_T0}, {WS_FLG}")
    a(f"buffer_store_dword v3, v2, s[{S_WS}:{S_WS+3}], s{S_T0} offen {SC}")
    a(f"L_{name}_end:\ns_endpgm")
    a(KD.format(name=name, vgpr=256))
    return f"; @launch kernel={name} grid=(256,1,1) block=(512,1,1) lds={lds}"

def gen_l3(a, st=False):
    name = "l3_kernel"
    c = Cfg(128, 224, 2, 2, 3, 16)
    c.jmap = [(j * 32, 192) for j in range(6)] + [(384, 32)]
    c.xflag = FL.get('3x', ''); c.wflag = FL.get('3w', '')
    AUX = c.ring_bytes; AUX2 = AUX + 1024
    lds = AUX2 + 1024
    S_MT = 57; S_NT = 58
    kernel_head(a, name)
    a("s_and_b32 s3, s2, 7\ns_lshr_b32 s4, s2, 3")
    a("s_lshr_b32 s5, s3, 2\ns_and_b32 s6, s3, 3")
    a("s_lshr_b32 s7, s4, 2\ns_and_b32 s4, s4, 3")
    a(f"s_lshl_b32 s5, s5, 3\ns_add_u32 s{S_MT}, s5, s7")
    a(f"s_lshl_b32 s6, s6, 2\ns_add_u32 s{S_NT}, s6, s4")
    a(f"s_lshl_b32 s{S_ROW0}, s{S_MT}, 7\ns_mul_i32 s{S_CB}, s{S_NT}, 448")
    a(f"s_mul_i32 s{S_ROT}, s7, {ROT[3][0]}\ns_mul_i32 s{S_T0}, s4, {ROT[3][1]}\ns_add_u32 s{S_ROT}, s{S_ROT}, s{S_T0}")
    a(f"s_cmp_ge_u32 s{S_ROT}, 16\ns_cselect_b32 s{S_T0}, 16, 0\ns_sub_u32 s{S_ROT}, s{S_ROT}, s{S_T0}")
    a(f"s_mov_b32 s{S_XSTR}, 2048\ns_mov_b32 s{S_KX}, 0\ns_mov_b32 s{S_KW}, 0")
    a(f"s_mov_b32 s{S_WSTR}, 7168\ns_mov_b32 s{S_CA}, 128\ns_mov_b32 s{S_CBB}, 64\ns_mov_b32 s{S_WSTEP}, {7168*64}")
    a("s_waitcnt lgkmcnt(0)")
    srd(a, S_WS, P_WS, 256 * MB)
    srd(a, S_XSRD, P_WS, 4 * MB, WS_X1)
    srd(a, S_WSRD, P_W3, 7 * MB)
    LLD = a.label("l3_ld")
    a(f"s_cmp_ge_u32 s{S_WAVE}, 4\ns_cbranch_scc1 {LLD}")
    R = CRegs(c, 0)
    VTID = R.free; VLN = VTID + 1; VO = VTID + 2; VO2 = VTID + 3; VT = VTID + 4
    a(f"v_mov_b32 v{VTID}, v0"); a(f"v_and_b32 v{VLN}, 63, v0")
    if st: a("s_memtime s[90:91]")
    emit_compute_setup(a, c, R, VTID, VT)
    for r in range(c.mb * c.nb * 4): a(f"v_mov_b32 v{r}, 0")
    emit_mainloop(a, c, R, "l3", wfirst=True, stamp="s_memtime s[92:93]" if st else None)
    if st: a("s_memtime s[94:95]")
    CK = R.frag0
    out_addr(a, c, VO, VLN, VT, S_ROW0, S_CB, 7168, wnb=192)
    a(f"s_and_b32 s{S_T1}, s{S_WAVE}, 1\ns_lshl_b32 s{S_T1}, s{S_T1}, 5\ns_add_u32 s{S_T1}, s{S_T1}, s{S_CB}")
    a(f"v_and_b32 v{VO2}, 15, v{VLN}\nv_add_u32 v{VO2}, s{S_T0}, v{VO2}\nv_mul_u32_u24 v{VO2}, 7168, v{VO2}\nv_add_u32 v{VO2}, s{S_T1}, v{VO2}")
    a(f"v_lshrrev_b32 v{VT}, 4, v{VLN}\nv_lshl_add_u32 v{VO2}, v{VT}, 3, v{VO2}")
    a(f"v_mov_b32 v{CK}, {f2u(GC1)}\nv_mov_b32 v{CK+1}, {f2u(GC1)}\nv_mov_b32 v{CK+2}, {f2u(GC0)}\nv_mov_b32 v{CK+3}, {f2u(GC0)}")
    STt = CK + 32; CS = CK + 40
    a(f"s_lshr_b32 s{S_T0}, s{S_WAVE}, 1\ns_and_b32 s{S_T1}, s{S_WAVE}, 1")
    a(f"s_lshl_b32 s{S_T0}, s{S_T0}, 9\ns_add_u32 s{S_T0}, s{S_T0}, {AUX}")
    a(f"v_and_b32 v{VT+1}, 15, v{VLN}\nv_lshl_add_u32 v{VT+1}, v{VT+1}, 3, s{S_T0}")
    a(f"s_lshl_b32 s{S_T2}, s{S_T1}, 6\ns_add_u32 s{S_T2}, s{S_T2}, {AUX2+768}")
    a(f"s_mul_i32 s{S_T1}, s{S_T1}, 384\ns_add_u32 s{S_T1}, s{S_T1}, {AUX2}")
    a(f"v_lshrrev_b32 v{VT+3}, 4, v{VLN}\nv_lshl_add_u32 v{VT+2}, v{VT+3}, 4, s{S_T1}\nv_lshl_add_u32 v{VT+3}, v{VT+3}, 4, s{S_T2}")
    a("s_barrier")
    for i in range(c.mb): a(f"ds_read_b64 {vr(STt+2*i,2)}, v{VT+1} offset:{i*128}")
    for j in range(6): a(f"ds_read_b128 {vr(CS+4*j,4)}, v{VT+2} offset:{j*64}")
    a(f"ds_read_b128 {vr(CS+24,4)}, v{VT+3}")
    a("s_waitcnt lgkmcnt(0)")
    T8 = CK + 8
    def lnfold(i, blocks):
        k = 0
        for (b, j) in blocks:
            for u in (0, 2):
                a(f"v_pk_mul_f32 {vr(T8+2*k,2)}, {vr(CS+4*j+u,2)}, {vr(STt+2*i,2)} op_sel:[0,1] op_sel_hi:[1,1]"); k += 1
        k = 0
        for (b, j) in blocks:
            for u in (0, 2):
                a(f"v_pk_fma_f32 {vr(b+u,2)}, {vr(b+u,2)}, {vr(STt+2*i,2)}, {vr(T8+2*k,2)} op_sel_hi:[1,0,1] neg_lo:[0,0,1] neg_hi:[0,0,1]"); k += 1
    n = 0
    for i in range(c.mb):
        for j in range(0, 6, 2):
            b0, b1 = R.accb(i, j), R.accb(i, j + 1)
            lnfold(i, [(b0, j), (b1, j + 1)])
            gelu8(a, b0, b1, T8, CK, CK + 2)
            store_pair(a, b0, b1, CK + 16 + 4 * (n & 3), VO, S_WS, WS_H2 + i * 16 * 7168, j * 32); n += 1
    for i in range(0, c.mb, 2):
        b0, b1 = R.accb(i, 6), R.accb(i + 1, 6)
        lnfold(i, [(b0, 6)]); lnfold(i + 1, [(b1, 6)])
        gelu8(a, b0, b1, T8, CK, CK + 2)
        for k, b in enumerate((b0, b1)):
            q = CK + 16 + 4 * (n & 3); n += 1
            a(f"v_cvt_pk_bf16_f32 v{q}, v{b}, v{b+1}"); a(f"v_cvt_pk_bf16_f32 v{q+1}, v{b+2}, v{b+3}")
            a(f"s_mov_b32 s{S_T3}, {WS_H2 + (i+k)*16*7168}")
            a(f"buffer_store_dwordx2 {vr(q,2)}, v{VO2}, s[{S_WS}:{S_WS+3}], s{S_T3} offen offset:384")
    if st: stamps_out(a, name, 0)
    a("s_endpgm")
    a(f"{LLD}:")
    VL = 1
    B = 64
    def first():
        a(f"s_mul_i32 s{S_T1}, s{S_T0}, 224\nv_lshl_add_u32 v{B}, v{VL}, 2, s{S_T1}")
        a(f"s_mul_i32 s{S_T2}, s{S_NT}, 896\ns_add_u32 s{S_T2}, s{S_T2}, {WS_CS3}")
        for ks in range(16):
            a(f"buffer_load_dword v{B+8+ks}, v{B}, s[{S_WS}:{S_WS+3}], s{S_T2} offen")
            a(f"s_add_u32 s{S_T2}, s{S_T2}, {3584*4}")
        a(f"s_and_b32 s{S_T1}, s{S_T0}, 1\ns_lshl_b32 s{S_T1}, s{S_T1}, 6\nv_add_u32 v{B+2}, s{S_T1}, v{VL}\nv_add_u32 v{B+3}, s{S_ROW0}, v{B+2}\nv_lshlrev_b32 v{B+3}, 3, v{B+3}")
        for g in range(16):
            a(f"s_mov_b32 s{S_T2}, {WS_ST1 + g*16384}")
            a(f"buffer_load_dwordx2 {vr(B+32+2*g,2)}, v{B+3}, s[{S_WS}:{S_WS+3}], s{S_T2} offen")
        return 32
    emit_loader(a, c, "l3", first=first, tail=lambda: tails(a, 3))
    a(f"v_mov_b32 v{B+4}, v{B+32}\nv_mov_b32 v{B+5}, v{B+33}")
    for g in range(1, 16): a(f"v_pk_add_f32 {vr(B+4,2)}, {vr(B+4,2)}, {vr(B+32+2*g,2)}")
    a(f"v_mul_f32 v{B+4}, {f2u(1/1024)}, v{B+4}      ; mean")
    for g in range(16):
        a(f"v_mul_f32 v{B+7}, {f2u(1/64)}, v{B+32+2*g}")
        a(f"v_sub_f32 v{B+7}, v{B+7}, v{B+4}"); a(f"v_mul_f32 v{B+7}, v{B+7}, v{B+7}"); a(f"v_fmac_f32 v{B+5}, {f2u(64.0)}, v{B+7}")
    a(f"v_mov_b32 v{B+7}, {f2u(1e-5)}\nv_fmac_f32 v{B+7}, {f2u(1/1024)}, v{B+5}\nv_rsq_f32 v{B+5}, v{B+7}\ns_nop 0")
    a(f"v_mul_f32 v{B+7}, v{B+4}, v{B+5}\nv_mov_b32 v{B+4}, v{B+5}\nv_mov_b32 v{B+5}, v{B+7}")
    a(f"v_lshlrev_b32 v{B+2}, 3, v{B+2}\nv_add_u32 v{B+2}, {AUX}, v{B+2}\nds_write_b64 v{B+2}, {vr(B+4,2)}")
    for w in (8, 4, 2, 1):
        for u in range(w): a(f"v_add_f32 v{B+8+u}, v{B+8+u}, v{B+8+u+w}")
    a(f"v_add_u32 v{B}, {AUX2}, v{B}")
    a("s_mov_b32 exec_hi, 0x00ffffff")
    a(f"ds_write_b32 v{B}, v{B+8}")
    a("s_mov_b64 exec, -1")
    a("s_waitcnt lgkmcnt(0)")
    a("s_barrier")
    a(f"L_{name}_end:\ns_endpgm")
    a(KD.format(name=name, vgpr=256))
    return f"; @launch kernel={name} grid=(256,1,1) block=(512,1,1) lds={lds}"

def pf_select(a, srd_a, srd_b, step_a, step_b):
    a(f"s_cmp_lt_u32 s{S_WAVE}, 2")
    for u in range(3): a(f"s_cselect_b32 s{S_PF+u}, s{srd_a+u}, s{srd_b+u}")
    a(f"s_mov_b32 s{S_PF+3}, 0x20000")
    a(f"s_mov_b32 s{S_PFS}, {step_b}"); a(f"s_cmov_b32 s{S_PFS}, {step_a}")
    a(f"s_mov_b32 s{S_PFO}, 0")

def gen_l4(a, st=False):
    name = "l4_kernel"
    c = Cfg(128, 128, 2, 2, 4, 36)
    c.xflag = FL.get('4x', ''); c.wflag = FL.get('4w', '')
    lds = c.ring_bytes
    S_OUT = 40; S_X2 = 52; S_W2 = 60; S_MT = 57; S_NT = 58; S_TYPE = 56; S_SW = 59
    kernel_head(a, name)
    a(f"s_and_b32 s{S_TYPE}, s2, 1\ns_bfe_u32 s5, s2, 0x10002\ns_bfe_u32 s6, s2, 0x10001\ns_lshr_b32 s4, s2, 3")
    a("s_lshr_b32 s7, s4, 2\ns_and_b32 s4, s4, 3")
    a(f"s_lshl_b32 s5, s5, 3\ns_add_u32 s{S_MT}, s5, s7")
    a(f"s_lshl_b32 s6, s6, 2\ns_add_u32 s{S_NT}, s6, s4")
    a(f"s_lshl_b32 s{S_ROW0}, s{S_MT}, 7\ns_lshl_b32 s{S_CB}, s{S_NT}, 8")
    a(f"s_mul_i32 s{S_ROT}, s7, {ROT[4][0]}\ns_mul_i32 s{S_T0}, s4, {ROT[4][1]}\ns_add_u32 s{S_ROT}, s{S_ROT}, s{S_T0}")
    a(f"s_mov_b32 s{S_WSTR}, 2048\ns_mov_b32 s{S_CA}, 128\ns_mov_b32 s{S_CBB}, 64\ns_mov_b32 s{S_WSTEP}, {2048*64}")
    a("s_waitcnt lgkmcnt(0)")
    srd(a, S_WS, P_WS, 256 * MB)
    srd(a, S_X2, P_WS, 2048 * 7168, WS_H2)
    srd(a, S_W2, P_W4, 7 * MB)
    srd(a, S_OUT, P_OUT, 4 * MB)
    srd(a, S_XSRD, P_WS, 4 * MB, WS_O)
    srd(a, S_WSRD, P_WO, 2 * MB)
    a(f"s_mov_b32 s{S_XSTR}, 2048\ns_mov_b32 s{S_KX}, 0\ns_mov_b32 s{S_KW}, 0\ns_mov_b32 s{S_SW}, 16")
    LA = a.label("l4_ta")
    a(f"s_cmp_eq_u32 s{S_TYPE}, 0\ns_cbranch_scc1 {LA}")
    for u in range(3): a(f"s_mov_b32 s{S_XSRD+u}, s{S_X2+u}"); a(f"s_mov_b32 s{S_WSRD+u}, s{S_W2+u}")
    a(f"s_mov_b32 s{S_XSTR}, 7168\ns_mov_b32 s{S_KX}, 2560\ns_mov_b32 s{S_KW}, {1280*2048}\ns_mov_b32 s{S_SW}, 1000")
    a(f"{LA}:")
    LLD = a.label("l4_ld")
    a(f"s_cmp_ge_u32 s{S_WAVE}, 4\ns_cbranch_scc1 {LLD}")
    R = CRegs(c, 0)
    VTID = R.free; VLN = VTID + 1; VO = VTID + 2; VE = VTID + 3; VT = VTID + 4
    AS = (VT + 8 + 3) // 4 * 4; XR = AS + 32; GR = XR + 16; RC = GR + 8
    assert RC + 32 <= 256
    a(f"v_mov_b32 v{VTID}, v0"); a(f"v_and_b32 v{VLN}, 63, v0")
    if st: a("s_memtime s[90:91]")
    out_addr(a, c, VO, VLN, VT, S_ROW0, S_CB, 2048)
    a(f"v_and_b32 v{VT}, 15, v{VLN}\nv_add_u32 v{VT}, s{S_T0}, v{VT}\nv_lshlrev_b32 v{VT}, 4, v{VT}")
    a(f"s_mov_b32 s{S_T3}, {WS_STAT}")
    for i in range(c.mb): a(f"buffer_load_dword v{GR+2*i}, v{VT}, s[{S_WS}:{S_WS+3}], s{S_T3} offen offset:{8+i*256}")
    a(f"s_lshl_b32 s{S_T0}, s{S_TYPE}, 16\nv_add_u32 v{VO}, s{S_T0}, v{VO}")
    n = 0
    for ii in range(2):
        for j in range(0, c.nb, 2):
            a(f"s_mov_b32 s{S_T3}, {WS_X1 + ii*16*2048}")
            a(f"buffer_load_dwordx4 {vr(XR+4*n,4)}, v{VO}, s[{S_WS}:{S_WS+3}], s{S_T3} offen offset:{j*32}"); n += 1
    emit_compute_setup(a, c, R, VTID, VT)
    for r in range(64): a(f"v_mov_b32 v{r}, 0")
    for r in range(32): a(f"v_mov_b32 v{AS+r}, 0")
    def stash():
        LX = a.label("l4_nst")
        a(f"s_cmp_lg_u32 s{S_TYPE}, 0\ns_cbranch_scc1 {LX}")
        a("s_nop 7")
        for r in range(32): a(f"v_cvt_pk_bf16_f32 v{AS+r}, v{2*r}, v{2*r+1}")
        for r in range(64): a(f"v_mov_b32 v{r}, 0")
        a("s_nop 1")
        a(f"{LX}:")
    emit_mainloop(a, c, R, "l4", wfirst=True, stamp="s_memtime s[92:93]" if st else None, hooks=[(17, stash)])
    if st: a("s_memtime s[94:95]")
    CK = R.frag0
    a("s_waitcnt vmcnt(0)\ns_nop 4")
    for i in range(c.mb): a(f"v_sub_f32 v{GR+2*i+1}, 1.0, v{GR+2*i}")
    a(f"v_lshlrev_b32 v{VE}, 4, v{VLN}")
    a(f"s_lshl_b32 s{S_T0}, s2, 2\ns_add_u32 s{S_T0}, s{S_T0}, s{S_WAVE}")
    a(f"s_lshl_b32 s62, s{S_T0}, 13\ns_add_u32 s62, s62, {WS_XCH}")
    a(f"s_lshl_b32 s63, s{S_T0}, 6\ns_add_u32 s63, s63, {WS_FLG}")
    a(f"s_xor_b32 s{S_T0}, s{S_T0}, 4")
    a(f"s_lshl_b32 s60, s{S_T0}, 13\ns_add_u32 s60, s60, {WS_XCH}")
    a(f"s_lshl_b32 s61, s{S_T0}, 6\ns_add_u32 s61, s61, {WS_FLG}")
    def uterm(i):
        for j in range(c.nb):
            b = R.accb(i, j); sa = AS + b // 2
            a(f"v_lshlrev_b32 v{CK}, 16, v{sa}\nv_and_b32 v{CK+1}, 0xffff0000, v{sa}\nv_lshlrev_b32 v{CK+2}, 16, v{sa+1}\nv_and_b32 v{CK+3}, 0xffff0000, v{sa+1}")
            for u in (0, 2):
                a(f"v_pk_mul_f32 {vr(CK+u,2)}, {vr(CK+u,2)}, {vr(GR+2*i,2)} op_sel_hi:[1,0]")
            for u in (0, 2):
                a(f"v_pk_fma_f32 {vr(b+u,2)}, {vr(b+u,2)}, {vr(GR+2*i,2)}, {vr(CK+u,2)} op_sel:[0,1,0] op_sel_hi:[1,1,1]")
    LB = a.label("l4_eb"); LF = a.label("l4_ef")
    a(f"s_cmp_eq_u32 s{S_TYPE}, 1\ns_cbranch_scc1 {LB}")
    for ty in range(2):
        keep = [0, 1] if ty == 0 else [2, 3]; send = [2, 3] if ty == 0 else [0, 1]
        if ty == 1: a(f"{LB}:")
        n = 0
        for i in send:
            uterm(i)
            for j in range(c.nb):
                a(f"buffer_store_dwordx4 {vr(R.accb(i,j),4)}, v{VE}, s[{S_WS}:{S_WS+3}], s62 offen offset:{(n&3)*1024} {SC}"); n += 1
                if n == 4: a("s_add_u32 s62, s62, 4096")
        n = 0
        for ii, i in enumerate(keep):
            uterm(i)
            for j in range(0, c.nb, 2):
                b0, b1 = R.accb(i, j), R.accb(i, j + 1)
                unswap_unpack(a, XR + 4 * n, CK, CK + 4); n += 1
                for k, p in enumerate((b0, b0 + 2, b1, b1 + 2)):
                    a(f"v_pk_fma_f32 {vr(p,2)}, {vr(CK+2*k,2)}, {vr(GR+2*i,2)}, {vr(p,2)} op_sel:[0,1,0] op_sel_hi:[1,1,1]")
        a("s_waitcnt vmcnt(0)")
        a(f"v_mov_b32 v{VT}, 1\nv_mov_b32 v{VT+1}, 0")
        a("s_mov_b64 exec, 1")
        a(f"buffer_store_dword v{VT}, v{VT+1}, s[{S_WS}:{S_WS+3}], s63 offen {SC}")
        LP = a.label("l4_poll")
        a(f"{LP}:")
        a(f"buffer_load_dword v{VT+2}, v{VT+1}, s[{S_WS}:{S_WS+3}], s61 offen {SC}")
        a(f"s_waitcnt vmcnt(0)\nv_readfirstlane_b32 s{S_T0}, v{VT+2}\ns_cmp_eq_u32 s{S_T0}, 0\ns_cbranch_scc1 {LP}")
        a("s_mov_b64 exec, -1")
        for n in range(8):
            a(f"buffer_load_dwordx4 {vr(RC+4*n,4)}, v{VE}, s[{S_WS}:{S_WS+3}], s60 offen offset:{(n&3)*1024} {SC}")
            if n == 3: a("s_add_u32 s60, s60, 4096")
        n = 0
        for ii, i in enumerate(keep):
            for j in range(0, c.nb, 2):
                b0, b1 = R.accb(i, j), R.accb(i, j + 1)
                a(f"s_waitcnt vmcnt({6-2*n+n})" if False else f"s_waitcnt vmcnt({(6-2*n)+n})")
                r0 = RC + 4 * (ii * 4 + j)
                for k, p in enumerate((b0, b0 + 2, b1, b1 + 2)): a(f"v_pk_add_f32 {vr(p,2)}, {vr(p,2)}, {vr(r0+2*k,2)}")
                store_pair(a, b0, b1, CK + 16 + 4 * (n & 3), VO, S_OUT, ii * 16 * 2048, j * 32); n += 1
        if ty == 0: a(f"s_branch {LF}")
    a(f"{LF}:")
    if st: stamps_out(a, name, f"s{S_TYPE}")
    a("s_endpgm")
    a(f"{LLD}:")
    emit_loader(a, c, "l4", switch=dict(xstr=7168, s_at=S_SW, xsrd=S_X2, wsrd=S_W2, win=WIN4))
    a(f"L_{name}_end:\ns_endpgm")
    a(KD.format(name=name, vgpr=256))
    return f"; @launch kernel={name} grid=(256,1,1) block=(512,1,1) lds={lds}"
```

```python
import sys, gen
from core2 import KD
for kv in sys.argv[3:]:
    k_, v_ = kv.split("=", 1); setattr(gen, k_, eval(v_, vars(gen)))
s = gen.build([gen.gen_l1, gen.gen_l2, gen.gen_l3, gen.gen_l4], st=False)
lines = s.split("\n"); heads = lines[:4]; body = "\n".join(lines[4:])
body += '''.globl e_kernel
.p2align 8
.type e_kernel,@function
e_kernel:
s_endpgm
''' + KD.format(name="e_kernel", vgpr=32)
seq = sys.argv[2].split(",")
h = [("; @launch kernel=e_kernel grid=(256,1,1) block=(256,1,1) lds=0" if x == "e" else heads[int(x) - 1]) for x in seq]
open(sys.argv[1], "w").write("\n".join(h) + "\n" + body)
```

```python
import sys, gen
from core2 import KD
def probe(name, karg_off, off, nbytes, flag="", same=False, reps=1):
    per = nbytes // (32 if same else 256)
    n = per // 8192
    idx = "s_lshr_b32 s3, s2, 3" if same else "s_add_u32 s3, s2, 3\ns_and_b32 s3, s3, 255"
    return f'''.globl {name}
.p2align 8
.type {name},@function
{name}:
s_cmp_ge_u32 s2, 256
s_cbranch_scc1 {name}_e
s_load_dwordx2 s[4:5], s[0:1], {karg_off}
s_waitcnt lgkmcnt(0)
s_mov_b32 s8, s4
s_mov_b32 s9, s5
s_mov_b32 s10, {off+nbytes}
s_mov_b32 s11, 0x20000
{idx}
s_mul_i32 s3, s3, {per}
s_add_u32 s3, s3, {off}
v_lshlrev_b32 v1, 4, v0
s_mov_b32 s6, 0
{name}_l:
buffer_load_dwordx4 v[4:7], v1, s[8:11], s3 offen {flag}
s_add_u32 s3, s3, 8192
s_add_u32 s6, s6, 1
s_cmp_lt_u32 s6, {n}
s_cbranch_scc1 {name}_l
s_waitcnt vmcnt(0)
{name}_e:
s_endpgm
''' + KD.format(name=name, vgpr=32)
MB = 1 << 20
P = {
 "cold32": ("pa_kernel", 88, 128*MB, 32*MB),
 "cold32b": ("pb_kernel", 88, 128*MB + 24576*3, 32*MB),
 "w4all": ("pc_kernel", 56, 0, 6*MB, "", True),
 "wqall": ("pd_kernel", 8, 0, 6*MB, "", True),
 "cold32nt": ("pe_kernel", 88, 192*MB, 32*MB, "nt"),
}
def build(seq):
    s = gen.build([gen.gen_l1, gen.gen_l2, gen.gen_l3, gen.gen_l4], st=False)
    lines = s.split("\n"); heads = lines[:4]; body = "\n".join(lines[4:])
    for k in dict.fromkeys(seq):
        body += probe(*P[k])
    h = heads + [f"; @launch kernel={P[k][0]} grid=(256,1,1) block=(512,1,1) lds=0" for k in seq]
    return "\n".join(h) + "\n" + body
if __name__ == "__main__":
    V = {"va": [], "vb": ["cold32"], "vc": ["cold32", "cold32b"], "vd": ["w4all"], "ve": ["wqall"], "vf": ["cold32nt"]}
    if len(sys.argv) > 1:
        import hb
        c = hb.Ctx()
        for n, seq in V.items():
            k = c.load(n + ".s"); print(n, seq, c.time(k, reps=15)); k.unload()
    else:
        for n, seq in V.items(): open(n + ".s", "w").write(build(seq))
```
